```python
import torch

def _softmax(x, axis=-1):
    return torch.softmax(x, dim=axis)
def _gelu(x):
    return torch.nn.functional.gelu(x, approximate="tanh")
def _silu(x):
    return torch.nn.functional.silu(x)
def _sigmoid(x):
    return torch.sigmoid(x)
def _layernorm(x, axis=-1, eps=1e-5):
    m = x.mean(dim=axis, keepdim=True)
    v = x.var(dim=axis, keepdim=True, unbiased=False)
    return (x - m) / torch.sqrt(v + eps)
def _scatter_add(tgt, idx, src, axis=0):
    return tgt.clone().index_add_(axis, idx, src)
def _segment_sum(src, seg, n):
    out = torch.zeros((n,) + src.shape[1:], dtype=src.dtype)
    return out.index_add_(0, seg, src)
def _pad(x, pw):
    flat = tuple(v for pair in reversed(pw) for v in pair)
    return torch.nn.functional.pad(x, flat)

kernel_name = 'sequential_preLN__mha_block_cached__geglu_ffn__decode'

def setup_inputs():

    _w = (lambda a: (lambda t: t.to(torch.bfloat16) if t.is_floating_point() else t)(torch.as_tensor(a)))
    def _A_setup():
        B, Sq, D = 8, 1, 640
        H, Sk, Dh = 32, 4096, 128
        return {
            "x": _w((lambda *s: torch.randn(*s, dtype=torch.bfloat16) * 0.05)(B, Sq, D)),
            "k_cache": _w((lambda *s: torch.randn(*s, dtype=torch.bfloat16) * 3.2)(B, H, Sk, Dh)),
            "v_cache": _w((lambda *s: torch.randn(*s, dtype=torch.bfloat16) * 0.4)(B, H, Sk, Dh)),
            "wq": _w((lambda *s: torch.randn(*s, dtype=torch.bfloat16) * 3.2)(D, H * Dh) * (D ** -0.5)),
            "wo": _w((lambda *s: torch.randn(*s, dtype=torch.bfloat16) * 0.4)(H * Dh, D) * ((H * Dh) ** -0.5)),
        }
    _A_in = _A_setup()

    def _B_setup():
        B, S, D, F = 8, 1, 640, 1728
        return {
            "x": _w((lambda *s: torch.randn(*s, dtype=torch.bfloat16) * 0.05)(B, S, D)),
            "w_gate": _w((lambda *s: torch.randn(*s, dtype=torch.bfloat16) * 0.05)(D, F)),
            "w_up": _w((lambda *s: torch.randn(*s, dtype=torch.bfloat16) * 0.05)(D, F)),
            "w_down": _w((lambda *s: torch.randn(*s, dtype=torch.bfloat16) * 0.05)(F, D)),
        }
    _B_in = _B_setup()

    return {
        "A_x": _A_in["x"],
        "A_k_cache": _A_in["k_cache"],
        "A_v_cache": _A_in["v_cache"],
        "A_wq": _A_in["wq"],
        "A_wo": _A_in["wo"],
        "B_x": _B_in["x"],
        "B_w_gate": _B_in["w_gate"],
        "B_w_up": _B_in["w_up"],
        "B_w_down": _B_in["w_down"],
    }

def reference(A_x, A_k_cache, A_v_cache, A_wq, A_wo, B_x, B_w_gate, B_w_up, B_w_down):
    def _A_ref(x, k_cache, v_cache, wq, wo):
        B, Sq, D = x.shape
        H, Dh = 32, 128
        q = (lambda x, *d: x.permute(*d))((x @ wq).reshape(B, Sq, H, Dh), 0, 2, 1, 3)
        scores = torch.einsum("bhqd,bhkd->bhqk", q, k_cache) * (Dh ** -0.5)
        p = _softmax(scores, axis=-1)
        o = torch.einsum("bhqk,bhkd->bhqd", p, v_cache)
        return (lambda x, *d: x.permute(*d))(o, 0, 2, 1, 3).reshape(B, Sq, H * Dh) @ wo

    def _B_ref(x, w_gate, w_up, w_down):
        return (_gelu(x @ w_gate) * (x @ w_up)) @ w_down

    x = A_x
    h = x + _A_ref(_layernorm(x, axis=-1), A_k_cache, A_v_cache, A_wq, A_wo)
    h2 = h + _B_ref(_layernorm(h, axis=-1), B_w_gate, B_w_up, B_w_down)
    return h2
```

```python
import re
TRANS = ("v_exp_f32","v_log_f32","v_rcp_f32","v_rsq_f32","v_sqrt_f32","v_sin_f32","v_cos_f32")
def regs(op):
    op = op.strip()
    op = re.sub(r"^-|^abs\(|\)$|^\|", "", op).strip("|")
    m = re.fullmatch(r"([vsa])\[(\d+):(\d+)\]", op)
    if m: return {f"{m.group(1)}{i}" for i in range(int(m.group(2)), int(m.group(3))+1)}
    m = re.fullmatch(r"([vsa])(\d+)", op)
    if m: return {op}
    if op == "vcc": return {"vcc"}
    if op == "exec": return {"exec"}
    if op == "m0": return {"m0"}
    return set()
class I:
    def __init__(s, text):
        s.text = text
        t = text.split(";")[0].strip()
        s.label = t.endswith(":")
        s.dir = t.startswith(".") or not t
        parts = t.split(None, 1)
        s.op = parts[0] if parts else ""
        rest = parts[1] if len(parts) > 1 else ""
        ops = [o.strip() for o in re.split(r",(?![^\[]*\])", rest)] if rest else []
        s.mods = ""
        if ops:
            lp = ops[-1].split(None, 1)
            ops[-1] = lp[0]
            s.mods = lp[1] if len(lp) > 1 else ""
        s.ops = ops
        op = s.op
        s.valu = op.startswith("v_") and not op.startswith("v_mfma")
        s.mfma = op.startswith("v_mfma")
        s.vmem = op.startswith(("buffer_", "global_", "flat_"))
        s.ds = op.startswith("ds_")
        s.salu = op.startswith("s_")
        s.dpp = "_dpp" in op or any(k in s.mods for k in ("row_", "quad_perm", "wave_"))
        s.dot = op.startswith("v_dot")
        s.trans = op.replace("_e32","").replace("_e64","") in TRANS
        s.perml = op.startswith("v_permlane")
        s.rdlane = op.startswith(("v_readlane", "v_readfirstlane"))
        s.wr = set(); s.rd = set()
        R = [regs(o) for o in ops]
        if s.valu or s.mfma:
            if s.perml:
                s.wr = R[0] | R[1]; s.rd = R[0] | R[1]
            else:
                s.wr = set(R[0])
                k = 1
                if "_co_" in op or op.startswith("v_div_scale"):
                    s.wr |= R[1]; k = 2
                for r in R[k:]: s.rd |= r
                if op.startswith(("v_dot2c", "v_fmac", "v_writelane")) or s.dpp: s.rd |= R[0]
                if op.startswith("v_cndmask") and len(ops) == 3: s.rd |= {"vcc"}
                if op.startswith("v_cmpx"): s.wr |= {"exec"}
        elif s.vmem:
            load = "_load" in op
            atomic = "atomic" in op
            if load and "lds" not in s.mods.split():
                s.wr = set(R[0])
                for r in R[1:]: s.rd |= r
            else:
                for r in R: s.rd |= r
            s.store_wide = ("store" in op) and op.endswith(("x3", "x4"))
            if s.store_wide:
                s.sdata = R[0] if op.startswith("buffer") else R[1]
        elif s.ds:
            if "read" in op or "permute" in op or "swizzle" in op:
                s.wr = set(R[0])
                for r in R[1:]: s.rd |= r
            else:
                for r in R: s.rd |= r
        elif s.salu:
            if op.startswith(("s_cmp", "s_cbranch", "s_branch", "s_waitcnt", "s_nop", "s_barrier", "s_endpgm", "s_sleep", "s_setprio")):
                for r in R: s.rd |= r
            else:
                if R: s.wr = set(R[0])
                for r in R[1:]: s.rd |= r
                if "saveexec" in op: s.wr |= {"exec"}
        s.ws = 1
        if op == "s_nop": s.ws = int(ops[0], 0) + 1
def mfma_passes(op):
    if "16x16x32" in op or "16x16x16" in op: return 4
    if "32x32x16" in op or "32x32x8" in op: return 8
    raise ValueError(op)
def need(p, c):
    n = 0
    vw = {r for r in p.wr if r[0] in "va" and r != "vcc"}
    sw = {r for r in p.wr if r[0] == "s" or r in ("vcc",)}
    if p.valu:
        if c.dpp and (vw & c.rd): n = max(n, 2)
        if c.perml and (vw & c.rd): n = max(n, 2)
        if c.rdlane and (vw & c.rd): n = max(n, 1)
        if c.mfma and (vw & c.rd): n = max(n, 2)
        if p.trans and c.valu and not c.trans and (vw & c.rd): n = max(n, 1)
        if p.trans and (c.vmem or c.ds) and (vw & c.rd): n = max(n, 1)
        if p.dot and (vw & (c.rd | c.wr)) and (c.valu or c.mfma or c.vmem or c.ds):
            if c.op == p.op:
                ab = set()
                for o in c.ops[1:3]: ab |= regs(o)
                if vw & ab: n = max(n, 3)
            else: n = max(n, 3)
        if sw & c.rd:
            if c.valu: n = max(n, 4 if (c.rdlane or c.op.startswith("v_writelane")) else 2)
            if c.vmem: n = max(n, 5)
            if c.salu: n = max(n, 1)
        if "exec" in p.wr:
            if c.dpp: n = max(n, 5)
            if c.rdlane or c.perml or c.mfma: n = max(n, 4)
            if c.valu: n = max(n, 0)
    if p.mfma:
        ps = mfma_passes(p.op)
        t = {4: (6, 8), 8: (10, 12)}[ps]
        if c.mfma:
            cs = regs(c.ops[3]); ab = regs(c.ops[1]) | regs(c.ops[2])
            if vw & ab: n = max(n, t[1])
            if vw & cs and cs != vw: n = max(n, t[0])
        elif (c.valu or c.vmem or c.ds) and (vw & (c.rd | c.wr)): n = max(n, t[1])
        if c.valu and (regs(p.ops[3]) & c.wr): n = max(n, {4: 3, 8: 7}[ps])
    if p.vmem and getattr(p, "store_wide", False):
        if (c.valu or c.vmem or c.ds or c.mfma) and (p.sdata & c.wr): n = max(n, 2)
    if p.ds and p.op in ("ds_write_b128", "ds_write_b96"):
        pass
    if p.salu and "m0" in p.wr and (c.vmem and "lds" in c.mods.split()): n = max(n, 1)
    return n
def fix(lines, verbose=False):
    out = []
    added = 0
    for ln in lines:
        c = I(ln)
        if c.dir or c.label:
            out.append(c); continue
        d = 0; req = 0
        for p in reversed(out):
            if p.dir: continue
            if p.label: continue
            r = need(p, c) - d
            req = max(req, r)
            d += p.ws
            if d >= 20: break
        if req > 0:
            n = I(f"  s_nop {req-1}")
            out.append(n); added += 1
            if verbose: print("nop", req, "before", ln.strip())
        out.append(c)
    return [o.text for o in out], added
```

```python
import sys
import hazard
KN = "sequential_preLN__mha_block_cached__geglu_ffn__decode_kernel"

HEADER = """; Fused pre-LN attention (KV-cache decode) + GEGLU FFN, one launch, 256 workgroups x 512 threads.
"""

PART = 0
HBUF = 0xA0000
ACT  = 0xB0000
WSSZ = 0xC0000
TSOFF = 0x200000
DUMP = 0x300000
L_RED = 0
L_QB = 4096
L_ST = 6144
L_RED2 = 8192
L_XN = 28672
XPITCH = 1344
L_RED3 = 40960
LDS_BYTES = 49152

V_TID, V_LANE, V_KV = 0, 1, 2
V_Q = 3
V_C16 = 7
RING = 8
VP = 40
VS = 56
VH = 64
ACC = 72
RA = 80
RB = 160
RC = 192
T = 224
V_TS = 255

LOG2E = 0x3fb8aa3b
SCALE = 0x3db504f3

class G:
    def __init__(s, **kw):
        s.L = []; s.q = []; s.uid = 0
        s.D = kw.get("D", 3); s.NB = kw.get("NB", 4); s.NPRE = kw.get("NPRE", 12); s.XV = kw.get("XV", 4)
        s.ts = kw.get("ts", 0); s.dump = kw.get("dump", 0); s.pol = kw.get("pol", "nt")
        s.sleep = kw.get("sleep", 1)
        s.wpol = kw.get("wpol", "")
        s.nts = 0
    def A(s, t): s.L.append("  " + t)
    def lab(s, t): s.L.append(t + ":")
    def vm(s, t, tag=None):
        s.A(t); s.uid += 1
        tag = tag or f"_{s.uid}"
        s.q.append(tag); return tag
    def wait(s, tag):
        if tag not in s.q: return
        i = s.q.index(tag); n = len(s.q) - 1 - i
        assert n <= 63, n
        s.A(f"s_waitcnt vmcnt({n})"); s.q = s.q[i+1:]
    def waitall(s):
        s.A("s_waitcnt vmcnt(0)"); s.q = []
    def stamp(s, k):
        if not s.ts: return
        s.A("s_memrealtime s[88:89]"); s.A("s_waitcnt lgkmcnt(0)"); s.A(f"v_writelane_b32 v{V_TS}, s88, {k}")
    def srd(s, d, lo, hi, off, nrec):
        s.A(f"s_add_u32 s{d}, s{lo}, {off}"); s.A(f"s_addc_u32 s{d+1}, s{hi}, 0")
        s.A(f"s_mov_b32 s{d+2}, {nrec}"); s.A(f"s_mov_b32 s{d+3}, 0x00020000")

def v(i, n=1): return f"v{i}" if n == 1 else f"v[{i}:{i+n-1}]"

def bf16r(g, dst, src):
    g.A(f"v_cvt_pk_bf16_f32 v{dst}, v{src}, v{src}")
    g.A(f"v_and_b32 v{dst}, 0xffff0000, v{dst}")

def wave_allreduce(g, rs, op):
    for sh in (8, 4, 2, 1):
        for r in rs: g.A(f"{op}_dpp v{r}, v{r}, v{r} row_ror:{sh} row_mask:0xf bank_mask:0xf")
    for sw in ("16", "32"):
        for k, r in enumerate(rs):
            t = T + 28 + k
            g.A(f"v_mov_b32 v{t}, v{r}")
        for k, r in enumerate(rs):
            t = T + 28 + k
            g.A(f"v_permlane{sw}_swap_b32 v{r}, v{t}")
        for k, r in enumerate(rs):
            t = T + 28 + k
            g.A(f"{op} v{r}, v{r}, v{t}")

def ln_stats(g, d4, d1, vm, vr):
    src = [d4, d4+1, d4+2, d4+3, d1]
    for k, r in enumerate(src):
        g.A(f"v_lshlrev_b32 v{T+2*k}, 16, v{r}")
        g.A(f"v_and_b32 v{T+2*k+1}, 0xffff0000, v{r}")
    g.A(f"v_readfirstlane_b32 s42, v{T}")
    s1, s2, d = T+10, T+11, T+12
    g.A(f"v_subrev_f32 v{s1}, s42, v{T}")
    g.A(f"v_mul_f32 v{s2}, v{s1}, v{s1}")
    for k in range(1, 10):
        g.A(f"v_subrev_f32 v{d}, s42, v{T+k}")
        g.A(f"v_add_f32 v{s1}, v{s1}, v{d}")
        g.A(f"v_fmac_f32 v{s2}, v{d}, v{d}")
    wave_allreduce(g, [s1, s2], "v_add_f32")
    g.A("s_mov_b32 s43, 0x3acccccd")
    g.A(f"v_mul_f32 v{s1}, s43, v{s1}")
    g.A(f"v_mul_f32 v{s2}, s43, v{s2}")
    g.A(f"v_fma_f32 v{s2}, -v{s1}, v{s1}, v{s2}")
    g.A(f"v_max_f32 v{s2}, 0, v{s2}")
    g.A(f"v_add_f32 v{s1}, s42, v{s1}")
    bf16r(g, vm, s1)
    bf16r(g, s2, s2)
    g.A(f"v_add_f32 v{s2}, 0x3727c5ac, v{s2}")
    bf16r(g, s2, s2)
    g.A(f"v_sqrt_f32 v{s2}, v{s2}")
    bf16r(g, s2, s2)
    g.A(f"v_rcp_f32 v{vr}, v{s2}")

def reduce128(g, wait_tag=None):
    a = ACC
    for t in range(4): g.A(f"v_permlane32_swap_b32 v{a+t}, v{a+t+4}")
    for t in range(4): g.A(f"v_add_f32 v{a+t}, v{a+t}, v{a+t+4}")
    g.A(f"v_permlane16_swap_b32 v{a}, v{a+2}")
    g.A(f"v_permlane16_swap_b32 v{a+1}, v{a+3}")
    g.A(f"v_add_f32 v{a}, v{a}, v{a+2}")
    g.A(f"v_add_f32 v{a+1}, v{a+1}, v{a+3}")
    g.A(f"ds_write_b64 v{V_RW}, v[{a}:{a+1}] offset:{L_RED}")
    g.A("s_waitcnt lgkmcnt(0)")
    g.A("s_barrier")
    for i in range(8):
        g.A(f"ds_read_b64 v[{T+2*i}:{T+2*i+1}], v{V_L8} offset:{L_RED + 512*i}")
    for i in range(1, 8):
        g.A(f"s_waitcnt lgkmcnt({7-i})")
        g.A(f"v_pk_add_f32 v[{T}:{T+1}], v[{T}:{T+1}], v[{T+2*i}:{T+2*i+1}]")
    g.A(f"v_cvt_pk_bf16_f32 v{T+16}, v{T}, v{T+1}")

V_RW = T + 24
V_L8 = T + 25
V_PO = T + 26
V_X = T + 27

def gen(**kw):
    g = G(**kw); A = g.A; D = g.D; NB = g.NB
    L = g.L
    for ln in HEADER.splitlines(): L.append(ln)
    L.append(f"; @launch grid=(256,1,1) block=(512,1,1) lds={LDS_BYTES}")
    L.append('.amdgcn_target "amdgcn-amd-amdhsa--gfx950"')
    L.append(".text"); L.append(f".globl {KN}"); L.append(".p2align 8"); L.append(f".type {KN},@function"); L.append(f"{KN}:")
    A("s_cmp_ge_u32 s2, 256")
    A("s_cbranch_scc1 L_end")
    A("s_load_dwordx16 s[64:79], s[0:1], 0")
    A("s_load_dwordx8 s[80:87], s[0:1], 64")
    if g.ts: A(f"v_mov_b32 v{V_TS}, 0")
    A("v_lshrrev_b32 v8, 6, v0")
    A(f"v_and_b32 v{V_LANE}, 63, v0")
    A("v_readfirstlane_b32 s3, v8")
    A(f"v_and_b32 v{V_C16}, 15, v0")
    A("s_lshr_b32 s38, s2, 5")
    A("s_and_b32 s39, s2, 31")
    A(f"v_lshlrev_b32 v{V_KV}, 4, v{V_LANE}")
    A("s_lshl_b32 s42, s3, 12")
    A(f"v_add_u32 v{V_KV}, s42, v{V_KV}")
    A(f"v_bfe_u32 v9, v0, 4, 2")
    A("s_mul_i32 s42, s3, 80")
    A("v_add_u32 v10, s42, v9")
    A(f"v_lshlrev_b32 v11, 4, v{V_C16}")
    A("v_lshl_add_u32 v12, v10, 13, v11")
    A(f"v_lshl_add_u32 v13, v{V_C16}, 2, v10")
    A("v_lshlrev_b32 v13, 1, v13")
    A(f"v_lshlrev_b32 v14, 4, v{V_LANE}")
    A(f"v_lshlrev_b32 v15, 2, v{V_LANE}")
    A(f"v_lshlrev_b32 v{V_L8}, 3, v{V_LANE}")
    A("s_lshl_b32 s42, s3, 9")
    A(f"v_lshlrev_b32 v16, 5, v{V_C16}")
    A("v_lshl_add_u32 v16, v9, 3, v16")
    A(f"v_add_u32 v{V_RW}, s42, v16")
    A("s_mul_i32 s42, s38, 20")
    A("v_lshrrev_b32 v16, 3, v0")
    A("v_add_u32 v16, s42, v16")
    A("v_lshlrev_b32 v16, 12, v16")
    A("v_and_b32 v17, 7, v0")
    A("v_lshl_add_u32 v16, v17, 4, v16")
    A("s_lshl_b32 s42, s39, 7")
    A("v_add_u32 v16, s42, v16")
    A("v_mov_b32 v17, 0x7ffffff0")
    A("v_cmp_gt_u32 vcc, 160, v0")
    A(f"v_cndmask_b32 v{V_PO}, v17, v16, vcc")
    A("s_mov_b32 s44, 0"); A("s_mov_b32 s45, 0")
    A("s_mov_b32 s56, 0x7ffffff0")
    A("s_cmp_lt_u32 s39, 5")
    A("s_cbranch_scc0 L_r1")
    A("s_mov_b32 s44, 1")
    A("s_mul_i32 s56, s38, 1280"); A("s_lshl_b32 s42, s39, 8"); A("s_add_u32 s56, s56, s42"); A(f"s_add_u32 s56, s56, {HBUF}")
    A("s_branch L_r3")
    g.lab("L_r1")
    A("s_cmp_lt_u32 s39, 19")
    A("s_cbranch_scc0 L_r2")
    A("s_sub_u32 s45, s39, 5"); A("s_lshl_b32 s45, s45, 3"); A("s_add_u32 s45, s45, s38")
    A("s_cmp_lt_u32 s45, 108")
    A("s_cbranch_scc0 L_r3")
    A("s_mov_b32 s44, 2")
    A("s_lshl_b32 s56, s45, 8"); A(f"s_add_u32 s56, s56, {ACT}")
    A("s_branch L_r3")
    g.lab("L_r2")
    A("s_cmp_lt_u32 s39, 24")
    A("s_cbranch_scc0 L_r3")
    A("s_mov_b32 s44, 3")
    A("s_sub_u32 s45, s39, 19"); A("s_lshl_b32 s45, s45, 3"); A("s_add_u32 s45, s45, s38")
    g.lab("L_r3")
    A("v_subrev_u32 v16, 192, v0")
    A("v_lshlrev_b32 v18, 4, v16")
    A("v_add_u32 v18, s56, v18")
    A("v_cmp_gt_u32 vcc, 16, v16")
    A("v_cndmask_b32 v18, v17, v18, vcc")
    for k in range(4): A(f"v_mov_b32 v{20+k}, -1")
    A("s_waitcnt lgkmcnt(0)")
    g.stamp(0)
    A("s_mul_i32 s42, s38, 1280")
    g.srd(28, 64, 65, "s42", 1280)
    A("s_lshl_b32 s42, s39, 8")
    A(f"s_sub_u32 s43, {640*8192}, s42")
    g.srd(16, 70, 71, "s42", "s43")
    A("s_lshl_b32 s42, s2, 20")
    g.srd(4, 66, 67, "s42", 1 << 20)
    X4, X1, XM0, XM1 = T+16, T+20, T+21, T+22
    g.vm(f"buffer_load_dwordx4 v[{X4}:{X4+3}], v14, s[28:31], 0 offen")
    g.vm(f"buffer_load_dword v{X1}, v15, s[28:31], 0 offen offset:1024")
    g.vm(f"buffer_load_ushort v{XM0}, v13, s[28:31], 0 offen")
    g.vm(f"buffer_load_ushort v{XM1}, v13, s[28:31], 0 offen offset:128", "x")
    def kv_load(buf, srd, n, tag, soff=None):
        win = n >> 2; imm = (n & 3) * 1024
        if soff is None:
            if win == 0: so = "0"
            else:
                A(f"s_mov_b32 s42, {win*32768}"); so = "s42"
        else: so = soff
        g.vm(f"buffer_load_dwordx4 v[{buf}:{buf+3}], v{V_KV}, {srd}, {so} offen offset:{imm} {g.pol}", tag)
    def kbuf(n): return RB + 4*n if n < 16 else RING + 4*(n % NB)
    kn = 0
    early = min(8, g.NPRE)
    for j in range(20):
        if j == 0: so = "0"
        else:
            A(f"s_mov_b32 s42, {j*32768}"); so = "s42"
        g.vm(f"buffer_load_dwordx4 v[{RA+4*j}:{RA+4*j+3}], v12, s[16:19], {so} offen {g.wpol}", f"wq{j}")
        if j % 5 == 4:
            for _ in range(early // 4):
                kv_load(kbuf(kn), "s[4:7]", kn, f"k{kn}"); kn += 1
    while kn < g.NPRE:
        kv_load(kbuf(kn), "s[4:7]", kn, f"k{kn}"); kn += 1
    A("s_lshl_b32 s42, s2, 20")
    g.srd(8, 68, 69, "s42", 1 << 20)
    g.srd(24, 86, 87, 0, WSSZ)
    g.vm(f"buffer_store_dwordx4 v[20:23], v{V_PO}, s[24:27], 0 offen sc1")
    g.vm(f"buffer_store_dwordx4 v[20:23], v18, s[24:27], 0 offen sc1", "clr")
    g.srd(32, 82, 83, 0, 10240)
    g.wait("x")
    VM, VR = T+13, T+14
    ln_stats(g, X4, X1, VM, VR)
    MLO0, MHI0, MLO1, MHI1 = T+16, T+17, T+18, T+19
    for src, lo, hi in ((XM0, MLO0, MHI0), (XM1, MLO1, MHI1)):
        A(f"v_lshlrev_b32 v{src}, 16, v{src}")
        A(f"v_sub_f32 v{src}, v{src}, v{VM}")
        bf16r(g, src, src)
        A(f"v_mul_f32 v{src}, v{src}, v{VR}")
        A(f"v_cvt_pk_bf16_f32 v{lo}, v{src}, 0")
        A(f"v_lshlrev_b32 v{hi}, 16, v{lo}")
    for e in range(8): A(f"v_mov_b32 v{ACC+e}, 0")
    def pv(buf, lo, hi, j):
        for t in range(4):
            A(f"v_dot2c_f32_bf16_dpp v{ACC+2*t}, v{lo}, v{buf+t} row_newbcast:{j} row_mask:0xf bank_mask:0xf")
            A(f"v_dot2c_f32_bf16_dpp v{ACC+2*t+1}, v{hi}, v{buf+t} row_newbcast:{j} row_mask:0xf bank_mask:0xf")
    for j in range(20):
        g.wait(f"wq{j}")
        if j < 16: pv(RA+4*j, MLO0, MHI0, j)
        else: pv(RA+4*j, MLO1, MHI1, j-16)
    g.stamp(1)
    g.wait("clr")
    reduce128(g)
    A("s_lshl_b32 s42, s3, 8")
    A(f"v_lshl_add_u32 v{T+17}, v{V_LANE}, 2, s42")
    A(f"v_lshl_add_u32 v{T+18}, v{V_C16}, 4, s42")
    A(f"ds_write_b32 v{T+17}, v{T+16} offset:{L_QB}")
    A("s_waitcnt lgkmcnt(0)")
    A(f"ds_read_b128 v[{T}:{T+3}], v{T+18} offset:{L_QB}")
    A("s_cmp_lg_u32 s3, 0")
    A("s_cbranch_scc1 L_nocnt")
    A(f"v_mov_b32 v{T+4}, 0"); A(f"v_mov_b32 v{T+5}, 1")
    A("s_mov_b64 exec, 1")
    A(f"global_atomic_add v{T+4}, v{T+5}, s[84:85] sc1")
    A("s_mov_b64 exec, -1")
    g.lab("L_nocnt")
    A("s_waitcnt lgkmcnt(0)")
    for t in range(4): A(f"v_mov_b32 v{V_Q+t}, v{T+t}")
    if g.dump:
        A(f"s_lshl_b32 s42, s2, 8"); A(f"s_add_u32 s42, s42, {DUMP}")
        A(f"v_add_u32 v{T+6}, s42, v15")
        A("s_cmp_lg_u32 s3, 0"); A("s_cbranch_scc1 L_nd1")
        A(f"global_store_dword v{T+6}, v{T+16}, s[86:87]")
        g.lab("L_nd1")
    g.stamp(2)
    A("s_lshl_b32 s42, s39, 7"); A("s_lshl_b32 s43, s3, 4"); A("s_add_u32 s42, s42, s43"); A("s_mul_i32 s42, s42, 1280")
    g.srd(16, 72, 73, "s42", 16*1280)
    A("s_mov_b32 s46, 0"); A("s_mov_b32 s57, 0"); A("s_mov_b32 s58, s76"); A("s_mov_b32 s59, s77"); A("s_mov_b32 s60, 0")
    A("s_cmp_eq_u32 s44, 2")
    A("s_cbranch_scc0 L_f1")
    A("s_mov_b32 s46, 3456")
    A("s_bitcmp1_b32 s3, 0")
    A("s_cselect_b32 s58, s78, s76"); A("s_cselect_b32 s59, s79, s77")
    A("s_lshr_b32 s42, s3, 1"); A("s_mul_i32 s57, s42, 160")
    A("s_mov_b32 s60, 160")
    A("s_branch L_f2")
    g.lab("L_f1")
    A("s_cmp_eq_u32 s44, 3")
    A("s_cbranch_scc0 L_f2")
    A("s_mov_b32 s46, 1280")
    A("s_mov_b32 s58, s80"); A("s_mov_b32 s59, s81")
    A("s_mul_i32 s57, s3, 224")
    A("s_sub_u32 s60, 1728, s57"); A("s_min_u32 s60, s60, 224")
    g.lab("L_f2")
    A("s_mul_i32 s42, s57, s46"); A("s_lshl_b32 s43, s45, 5"); A("s_add_u32 s42, s42, s43")
    A("s_mul_i32 s60, s60, s46"); A("s_sub_u32 s61, s60, s43"); A("s_cmp_eq_u32 s60, 0"); A("s_cselect_b32 s60, 0, s61")
    g.srd(20, 58, 59, "s42", "s60")
    A("s_lshl_b32 s42, s46, 3")
    A(f"v_bfe_u32 v{T+6}, v0, 4, 2")
    A(f"v_mul_lo_u32 v{T+6}, v{T+6}, s42")
    A(f"v_lshl_add_u32 v{V_X}, v{V_C16}, 1, v{T+6}")
    A("s_mov_b32 s47, 0")
    A("s_mul_i32 s61, s46, 25")
    A("s_mov_b32 s50, 0xcccccccc"); A("s_mov_b32 s51, 0xcccccccc")
    A("s_mov_b32 s52, 0xaaaaaaaa"); A("s_mov_b32 s53, 0xaaaaaaaa")
    A(f"s_mov_b32 s54, {SCALE}")
    A("s_mov_b32 s62, 0x05040100"); A("s_mov_b32 s63, 0x07060302")
    V14, V15 = T+22, T+23
    A(f"v_mov_b32 v{V14}, v14"); A(f"v_mov_b32 v{V15}, v15")

    def kdot(buf, j):
        A(f"v_dot2_f32_bf16 v{VP+j}, v{buf}, v{V_Q}, 0")
        for t in range(1, 4): A(f"v_dot2_f32_bf16 v{VP+j}, v{buf+t}, v{V_Q+t}, v{VP+j}")
    def kfinish():
        P = VP
        for a in range(8): A(f"v_add_f32_dpp v{P+a}, v{P+a}, v{P+a} row_shl:8 row_mask:0xf bank_mask:0x3")
        for a in range(8): A(f"v_add_f32_dpp v{P+a}, v{P+a+8}, v{P+a+8} row_shr:8 row_mask:0xf bank_mask:0xc")
        for a in range(4): A(f"v_add_f32_dpp v{P+a}, v{P+a}, v{P+a} row_shl:4 row_mask:0xf bank_mask:0x5")
        for a in range(4): A(f"v_add_f32_dpp v{P+a}, v{P+a+4}, v{P+a+4} row_shr:4 row_mask:0xf bank_mask:0xa")
        for a in range(4): A(f"v_add_f32_dpp v{P+a}, v{P+a}, v{P+a} quad_perm:[2,3,0,1] row_mask:0xf bank_mask:0xf")
        for a in range(2): A(f"v_cndmask_b32 v{P+a}, v{P+a}, v{P+a+2}, s[50:51]")
        for a in range(2): A(f"v_add_f32_dpp v{P+a}, v{P+a}, v{P+a} quad_perm:[1,0,3,2] row_mask:0xf bank_mask:0xf")
        for a in range(7): A(f"v_mov_b32 v{VS+a}, v{VS+a+1}")
        A(f"v_cndmask_b32 v{P}, v{P}, v{P+1}, s[52:53]")
        bf16r(g, P, P)
        A(f"v_mul_f32 v{P}, s54, v{P}")
        bf16r(g, VS+7, P)

    for _ in range(D):
        kv_load(kbuf(kn), "s[4:7]", kn, f"k{kn}"); kn += 1
    def kstep(n, extras=()):
        nonlocal kn
        j = n & 15
        g.wait(f"k{n}")
        if kn <= n + D and (D < NB or kn < 16):
            issue_next()
        for e in extras: e()
        kdot(kbuf(n), j)
        if kn <= n + D: issue_next()
    vn = 0
    def vbuf(n): return RC + 4*n if n < 8 else RING + 4*(n % NB)
    def issue_next():
        nonlocal kn, vn
        if kn < 128:
            kv_load(kbuf(kn), "s[4:7]", kn, f"k{kn}")
        else:
            kv_load(vbuf(vn), "s[8:11]", vn, f"v{vn}"); vn += 1
        kn += 1
    for n in range(16): kstep(n)
    kfinish()
    g.stamp(3)
    def wo_load(row):
        def f():
            u, odd = row >> 1, row & 1
            base = RA + 10*u + 5*odd
            b4 = RA + 10*u + 4*odd; b1 = RA + 10*u + 8 + odd
            A(f"s_mov_b32 s43, {row*1280}")
            g.vm(f"buffer_load_dwordx4 v[{b4}:{b4+3}], v{V14}, s[16:19], s43 offen {g.wpol}")
            g.vm(f"buffer_load_dword v{b1}, v{V15}, s[16:19], s43 offen offset:1024 {g.wpol}", f"wo{row}")
        return f
    for n in range(16, 32): kstep(n, [wo_load(n-16)])
    kfinish()
    def f_load(idx):
        def f():
            g.vm(f"buffer_load_ushort v{RB+idx}, v{V_X}, s[20:23], s47 offen", f"f{idx}")
            if idx % 8 == 7: A("s_add_u32 s47, s47, s61")
            else: A("s_add_u32 s47, s47, s46")
        return f
    def wo_perm(u):
        def f():
            g.wait(f"wo{2*u+1}")
            b = RA + 10*u
            for a, bb in [(b+t, b+4+t) for t in range(4)] + [(b+8, b+9)]:
                A(f"v_perm_b32 v{T}, v{bb}, v{a}, s62")
                A(f"v_perm_b32 v{bb}, v{bb}, v{a}, s63")
                A(f"v_mov_b32 v{a}, v{T}")
        return f
    for n in range(32, 48):
        i = n - 32
        ex = [f_load(4*i + t) for t in range(4) if 4*i + t < 56]
        if i % 2 == 1: ex.append(wo_perm(i >> 1))
        kstep(n, ex)
    kfinish()
    assert g.q[len(g.q)-(D-1):] == [f"k{49+i}" for i in range(D-1)], g.q
    A(f"s_mov_b32 s40, {3*131072}")
    A("s_mov_b32 s41, 3")
    g.lab("L_kloop")
    def loop_body(srd, consume):
        cur = None
        def issue(jn):
            nonlocal cur
            win = jn >> 2
            if win != cur:
                if win == 0: pass
                else: A(f"s_add_u32 s42, s40, {win*32768}")
                cur = win
            so = "s40" if win == 0 else "s42"
            b = RING + 4*(jn % NB)
            A(f"buffer_load_dwordx4 v[{b}:{b+3}], v{V_KV}, {srd}, {so} offen offset:{(jn&3)*1024} {g.pol}")
        for j in range(16):
            A(f"s_waitcnt vmcnt({D-1})")
            if D < NB: issue(j + D)
            consume(RING + 4*(j % NB), j)
            if D == NB: issue(j + D)
    loop_body("s[4:7]", kdot)
    kfinish()
    A("s_add_u32 s40, s40, 131072")
    A("s_add_u32 s41, s41, 1")
    A("s_cmp_lt_u32 s41, 7")
    A("s_cbranch_scc1 L_kloop")
    kn = 112 + D
    g.q = [f"k{112+i}" for i in range(D)]
    def f_pack(i):
        def f():
            for t in range(4):
                A(f"v_lshl_or_b32 v{RB+4*i+t}, v{RB+8*i+2*t+1}, 16, v{RB+8*i+2*t}")
        return f
    for n in range(112, 128):
        i = n - 112
        kstep(n, [f_pack(i)] if i < 7 else [])
    for _ in range(g.XV): issue_next()
    kfinish()
    g.stamp(4)
    m, l = T, T+1
    A(f"v_max3_f32 v{m}, v{VS}, v{VS+1}, v{VS+2}")
    A(f"v_max3_f32 v{m}, v{m}, v{VS+3}, v{VS+4}")
    A(f"v_max3_f32 v{m}, v{m}, v{VS+5}, v{VS+6}")
    A(f"v_max_f32 v{m}, v{m}, v{VS+7}")
    wave_allreduce(g, [m], "v_max_f32")
    A(f"s_mov_b32 s55, {LOG2E}")
    for a in range(8):
        A(f"v_sub_f32 v{VS+a}, v{VS+a}, v{m}")
        A(f"v_mul_f32 v{VS+a}, s55, v{VS+a}")
    for a in range(8): A(f"v_exp_f32 v{VS+a}, v{VS+a}")
    A(f"v_add_f32 v{l}, v{VS}, v{VS+1}")
    for a in range(2, 8): A(f"v_add_f32 v{l}, v{l}, v{VS+a}")
    wave_allreduce(g, [l], "v_add_f32")
    A("s_lshl_b32 s42, s3, 3")
    A(f"v_mov_b32 v{T+2}, s42")
    A(f"ds_write_b64 v{T+2}, v[{m}:{l}] offset:{L_ST}")
    A("s_waitcnt lgkmcnt(0)")
    A("s_barrier")
    A(f"v_mov_b32 v{T+2}, 0")
    for i in range(4): A(f"ds_read_b128 v[{T+4+4*i}:{T+7+4*i}], v{T+2} offset:{L_ST+16*i}")
    A("s_waitcnt lgkmcnt(0)")
    M, Ls = T+2, T+3
    mi = [T+4+2*i for i in range(8)]; li = [T+5+2*i for i in range(8)]
    A(f"v_max3_f32 v{M}, v{mi[0]}, v{mi[1]}, v{mi[2]}")
    A(f"v_max3_f32 v{M}, v{M}, v{mi[3]}, v{mi[4]}")
    A(f"v_max3_f32 v{M}, v{M}, v{mi[5]}, v{mi[6]}")
    A(f"v_max_f32 v{M}, v{M}, v{mi[7]}")
    for r in mi + [m]:
        A(f"v_sub_f32 v{r}, v{r}, v{M}")
        A(f"v_mul_f32 v{r}, s55, v{r}")
    for r in mi + [m]: A(f"v_exp_f32 v{r}, v{r}")
    A(f"v_mul_f32 v{Ls}, v{mi[0]}, v{li[0]}")
    for i in range(1, 8): A(f"v_fmac_f32 v{Ls}, v{mi[i]}, v{li[i]}")
    A(f"v_rcp_f32 v{Ls}, v{Ls}")
    A(f"v_mul_f32 v{m}, v{m}, v{Ls}")
    for a in range(8): A(f"v_mul_f32 v{VS+a}, v{VS+a}, v{m}")
    for a in range(8): A(f"v_cvt_pk_bf16_f32 v{VS+a}, v{VS+a}, 0")
    for a in range(8): A(f"v_lshlrev_b32 v{VH+a}, 16, v{VS+a}")
    for e in range(8): A(f"v_mov_b32 v{ACC+e}, 0")
    g.stamp(5)
    def vshift():
        for a in range(7):
            A(f"v_mov_b32 v{VS+a}, v{VS+a+1}"); A(f"v_mov_b32 v{VH+a}, v{VH+a+1}")
    pre = vn
    for _ in range(D): issue_next()
    for n in range(16):
        g.wait(f"v{n}")
        if vn <= n + D and D < NB: issue_next()
        pv(vbuf(n), VS, VH, n)
        if vn <= n + D: issue_next()
    vshift()
    assert g.q == [f"v{16+i}" for i in range(D)], g.q
    A("s_mov_b32 s40, 131072")
    A("s_mov_b32 s41, 1")
    g.lab("L_vloop")
    loop_body("s[8:11]", lambda b, j: pv(b, VS, VH, j))
    vshift()
    A("s_add_u32 s40, s40, 131072")
    A("s_add_u32 s41, s41, 1")
    A("s_cmp_lt_u32 s41, 8")
    A("s_cbranch_scc1 L_vloop")
    g.q = []
    g.stamp(6)
    A(f"v_mov_b32 v{T+20}, 0")
    A(f"global_load_dword v{T+21}, v{T+20}, s[84:85] sc1")
    reduce128(g)
    if g.dump:
        A(f"s_lshl_b32 s42, s2, 8"); A(f"s_add_u32 s42, s42, {DUMP+0x10000}")
        A(f"v_add_u32 v{T+6}, s42, v{V15}")
        A("s_cmp_lg_u32 s3, 0"); A("s_cbranch_scc1 L_nd2")
        A(f"global_store_dword v{T+6}, v{T+16}, s[86:87]")
        g.lab("L_nd2")
    A("s_lshl_b32 s42, s3, 3")
    for u in range(8):
        A(f"v_readlane_b32 s{48+u}, v{T+16}, s42")
        if u < 7: A("s_add_u32 s42, s42, 1")
    WA = VP
    for n in range(10): A(f"v_mov_b32 v{WA+n}, 0")
    for u in range(8):
        for n in range(10):
            A(f"v_dot2c_f32_bf16 v{WA+n}, s{48+u}, v{RA+10*u+n}")
    A(f"v_mov_b32 v{T}, v{WA}"); A(f"v_mov_b32 v{T+1}, v{WA+4}"); A(f"v_mov_b32 v{T+2}, v{WA+1}"); A(f"v_mov_b32 v{T+3}, v{WA+5}")
    A(f"v_mov_b32 v{T+4}, v{WA+2}"); A(f"v_mov_b32 v{T+5}, v{WA+6}"); A(f"v_mov_b32 v{T+6}, v{WA+3}"); A(f"v_mov_b32 v{T+7}, v{WA+7}")
    A("s_mul_i32 s42, s3, 2560")
    A(f"v_add_u32 v{T+8}, s42, v{V14}")
    A(f"v_add_u32 v{T+9}, s42, v{V_L8}")
    A(f"ds_write_b128 v{T+8}, v[{T}:{T+3}] offset:{L_RED2}")
    A(f"ds_write_b128 v{T+8}, v[{T+4}:{T+7}] offset:{L_RED2+1024}")
    A(f"ds_write_b64 v{T+9}, v[{WA+8}:{WA+9}] offset:{L_RED2+2048}")
    A(f"v_and_b32 v{T+10}, 1, v0"); A(f"v_lshlrev_b32 v{T+10}, 10, v{T+10}")
    A(f"v_lshrrev_b32 v{T+11}, 1, v0"); A(f"v_lshl_add_u32 v{T+10}, v{T+11}, 4, v{T+10}")
    A(f"v_lshlrev_b32 v{T+11}, 4, v0")
    A("v_cmp_gt_u32 vcc, 128, v0")
    A(f"v_cndmask_b32 v{T+10}, v{T+11}, v{T+10}, vcc")
    A("s_waitcnt lgkmcnt(0)")
    A("s_barrier")
    A("s_cmp_gt_u32 s3, 2")
    A("s_cbranch_scc1 L_pub_done")
    R8 = RING
    for i in range(8): A(f"ds_read_b128 v[{R8+4*i}:{R8+4*i+3}], v{T+10} offset:{L_RED2+2560*i}")
    for i in range(1, 8):
        A(f"s_waitcnt lgkmcnt({7-i})")
        A(f"v_pk_add_f32 v[{R8}:{R8+1}], v[{R8}:{R8+1}], v[{R8+4*i}:{R8+4*i+1}]")
        A(f"v_pk_add_f32 v[{R8+2}:{R8+3}], v[{R8+2}:{R8+3}], v[{R8+4*i+2}:{R8+4*i+3}]")
    for t in range(4): A(f"v_min_u32 v{R8+t}, -2, v{R8+t}")
    A(f"buffer_store_dwordx4 v[{R8}:{R8+3}], v{V_PO}, s[24:27], 0 offen sc1")
    g.lab("L_pub_done")
    g.stamp(7)
    A("s_cmp_eq_u32 s44, 0")
    A("s_cbranch_scc1 L_fin")
    A("s_mov_b32 s41, 0")
    g.lab("L_rdy")
    A("s_waitcnt vmcnt(0)")
    A(f"v_readfirstlane_b32 s42, v{T+21}")
    A("s_cmp_ge_u32 s42, 256")
    A("s_cbranch_scc1 L_rdy_ok")
    A("s_add_u32 s41, s41, 1")
    A("s_cmp_gt_u32 s41, 400000")
    A("s_cbranch_scc1 L_rdy_ok")
    A(f"global_load_dword v{T+21}, v{T+20}, s[84:85] sc1")
    A("s_branch L_rdy")
    g.lab("L_rdy_ok")
    A("s_cmp_eq_u32 s44, 2")
    A("s_cbranch_scc1 L_ffn")
    A("s_cmp_eq_u32 s44, 3")
    A("s_cbranch_scc1 L_down")

    def poll(name, loads):
        A("s_mov_b32 s41, 0")
        for (ins, r, n) in loads: A(ins)
        g.lab(f"L_{name}_chk")
        A("s_waitcnt vmcnt(0)")
        for i, (ins, r, n) in enumerate(loads):
            ms = f"s[{64+2*i}:{65+2*i}]"
            if n == 4:
                A(f"v_max3_u32 v{T+29}, v{r}, v{r+1}, v{r+2}")
                A(f"v_max_u32 v{T+29}, v{T+29}, v{r+3}")
                A(f"v_cmp_eq_u32 {ms}, -1, v{T+29}")
            else:
                A(f"v_cmp_eq_u32 {ms}, -1, v{r}")
        A("s_mov_b64 s[42:43], s[64:65]")
        for i in range(1, len(loads)): A(f"s_or_b64 s[42:43], s[42:43], s[{64+2*i}:{65+2*i}]")
        A("s_cmp_eq_u64 s[42:43], 0")
        A(f"s_cbranch_scc1 L_{name}_ok")
        A("s_add_u32 s41, s41, 1")
        A("s_cmp_gt_u32 s41, 400000")
        A(f"s_cbranch_scc1 L_{name}_ok")
        if g.sleep: A(f"s_sleep {g.sleep}")
        for i, (ins, r, n) in enumerate(loads):
            A(f"s_mov_b64 exec, s[{64+2*i}:{65+2*i}]")
            A(f"s_cbranch_execz L_{name}_s{i}")
            A(ins)
            g.lab(f"L_{name}_s{i}")
        A("s_mov_b64 exec, -1")
        A(f"s_branch L_{name}_chk")
        g.lab(f"L_{name}_ok")

    A("s_cmp_gt_u32 s3, 3")
    A("s_cbranch_scc1 L_fin")
    A("s_lshl_b32 s42, s39, 2"); A("s_add_u32 s42, s42, s3")
    A("s_mul_i32 s43, s38, 20"); A("s_add_u32 s43, s43, s42"); A("s_lshl_b32 s40, s43, 12")
    A(f"v_and_b32 v{T}, 7, v0"); A(f"v_lshlrev_b32 v{T}, 3, v{T}")
    A(f"v_lshrrev_b32 v{T+1}, 5, v{V_LANE}"); A(f"v_lshl_add_u32 v{T}, v{T+1}, 2, v{T}")
    A("s_lshl_b32 s42, s42, 6")
    A(f"v_add_u32 v{T}, s42, v{T}")
    A(f"buffer_load_dword v{T+2}, v{T}, s[28:31], 0 offen")
    A("s_mul_i32 s42, s38, 1280"); A(f"s_add_u32 s42, s42, {HBUF}")
    A(f"v_add_u32 v{T}, s42, v{T}")
    poll("ra", [(f"buffer_load_dwordx4 v[{RING+4*i}:{RING+4*i+3}], v{V14}, s[24:27], s40 offen offset:{1024*i} sc1", RING+4*i, 4) for i in range(4)])
    g.stamp(8)
    r = RING
    for i in (1, 2, 3):
        A(f"v_pk_add_f32 v[{r}:{r+1}], v[{r}:{r+1}], v[{r+4*i}:{r+4*i+1}]")
        A(f"v_pk_add_f32 v[{r+2}:{r+3}], v[{r+2}:{r+3}], v[{r+4*i+2}:{r+4*i+3}]")
    A(f"v_permlane32_swap_b32 v{r}, v{r+2}")
    A(f"v_permlane32_swap_b32 v{r+1}, v{r+3}")
    A(f"v_add_f32 v{r}, v{r}, v{r+2}"); A(f"v_add_f32 v{r+1}, v{r+1}, v{r+3}")
    A(f"v_mov_b32 v{r+2}, v{r}"); A(f"v_mov_b32 v{r+3}, v{r+1}")
    A(f"v_permlane16_swap_b32 v{r}, v{r+2}")
    A(f"v_permlane16_swap_b32 v{r+1}, v{r+3}")
    A(f"v_add_f32 v{r}, v{r}, v{r+2}"); A(f"v_add_f32 v{r+1}, v{r+1}, v{r+3}")
    A(f"v_add_f32_dpp v{r}, v{r}, v{r} row_ror:8 row_mask:0xf bank_mask:0xf")
    A(f"v_add_f32_dpp v{r+1}, v{r+1}, v{r+1} row_ror:8 row_mask:0xf bank_mask:0xf")
    A(f"v_cvt_pk_bf16_f32 v{r}, v{r}, v{r+1}")
    A(f"v_lshlrev_b32 v{r+1}, 16, v{r}"); A(f"v_and_b32 v{r+2}, 0xffff0000, v{r}")
    A(f"v_lshlrev_b32 v{r+3}, 16, v{T+2}"); A(f"v_and_b32 v{r+4}, 0xffff0000, v{T+2}")
    A(f"v_add_f32 v{r+1}, v{r+1}, v{r+3}"); A(f"v_add_f32 v{r+2}, v{r+2}, v{r+4}")
    A(f"v_cvt_pk_bf16_f32 v{r}, v{r+1}, v{r+2}")
    A(f"v_min_u32 v{r}, -2, v{r}")
    A("s_mov_b32 exec_lo, 0xff"); A("s_mov_b32 exec_hi, 0xff")
    A(f"buffer_store_dword v{r}, v{T}, s[24:27], 0 offen sc1")
    A("s_mov_b64 exec, -1")
    g.stamp(9)
    A("s_branch L_fin")

    g.lab("L_ffn")
    A("s_mul_i32 s40, s3, 1280"); A(f"s_add_u32 s40, s40, {HBUF}")
    H4, H1 = RING, RING+4
    A(f"s_mul_i32 s42, s3, {XPITCH}")
    A(f"v_add_u32 v{RING+8}, s42, v{V14}")
    A(f"v_add_u32 v{RING+9}, s42, v{V15}")
    A(f"v_and_b32 v{RING+10}, 7, v0")
    A(f"s_mov_b32 s42, {XPITCH}")
    A(f"v_mul_lo_u32 v{RING+10}, v{RING+10}, s42")
    A(f"v_bfe_u32 v{RING+11}, v0, 4, 2")
    A(f"v_lshl_add_u32 v{RING+10}, v{RING+11}, 4, v{RING+10}")
    A("s_lshr_b32 s42, s3, 1"); A("s_mul_i32 s42, s42, 320")
    A(f"v_add_u32 v{RING+10}, s42, v{RING+10}")
    A("s_lshl_b32 s42, s3, 10")
    A(f"v_add_u32 v{RING+12}, s42, v{V14}")
    A(f"v_and_b32 v{RING+13}, 0x37, v{V_LANE}"); A(f"v_lshlrev_b32 v{RING+13}, 4, v{RING+13}")
    A(f"v_bfe_u32 v{RING+14}, v0, 3, 1"); A(f"v_lshl_add_u32 v{RING+13}, v{RING+14}, 3, v{RING+13}")
    A(f"v_bfe_u32 v{RING+15}, v0, 5, 1"); A(f"v_lshlrev_b32 v{RING+15}, 7, v{RING+15}")
    A(f"v_and_b32 v{RING+16}, 7, v0"); A(f"v_lshl_add_u32 v{RING+15}, v{RING+16}, 4, v{RING+15}")
    A(f"v_bfe_u32 v{RING+16}, v0, 4, 1"); A(f"v_lshl_add_u32 v{RING+15}, v{RING+16}, 3, v{RING+15}")
    A(f"v_lshl_add_u32 v{RING+15}, v{RING+14}, 2, v{RING+15}")
    poll("hb", [(f"buffer_load_dwordx4 v[{H4}:{H4+3}], v{V14}, s[24:27], s40 offen sc1", H4, 4),
                (f"buffer_load_dword v{H1}, v{V15}, s[24:27], s40 offen offset:1024 sc1", H1, 1)])
    g.stamp(8)
    ln_stats(g, H4, H1, T+13, T+14)
    for k in range(10): A(f"v_sub_f32 v{T+k}, v{T+k}, v{T+13}")
    for k in range(5): A(f"v_cvt_pk_bf16_f32 v{H4+k}, v{T+2*k}, v{T+2*k+1}")
    for k in range(5):
        A(f"v_lshlrev_b32 v{T+2*k}, 16, v{H4+k}"); A(f"v_and_b32 v{T+2*k+1}, 0xffff0000, v{H4+k}")
    for k in range(10): A(f"v_mul_f32 v{T+k}, v{T+k}, v{T+14}")
    for k in range(5): A(f"v_cvt_pk_bf16_f32 v{H4+k}, v{T+2*k}, v{T+2*k+1}")
    A(f"ds_write_b128 v{RING+8}, v[{H4}:{H4+3}] offset:{L_XN}")
    A(f"ds_write_b32 v{RING+9}, v{H1} offset:{L_XN+1024}")
    A("s_waitcnt lgkmcnt(0)")
    A("s_barrier")
    BF = VP
    for i in range(5): A(f"ds_read_b128 v[{BF+4*i}:{BF+4*i+3}], v{RING+10} offset:{L_XN+64*i}")
    for i in range(5):
        A(f"s_waitcnt lgkmcnt({4-i})")
        c = "0" if i == 0 else f"v[{ACC}:{ACC+3}]"
        A(f"v_mfma_f32_16x16x32_bf16 v[{ACC}:{ACC+3}], v[{RB+4*i}:{RB+4*i+3}], v[{BF+4*i}:{BF+4*i+3}], {c}")
    A(f"ds_write_b128 v{RING+12}, v[{ACC}:{ACC+3}] offset:{L_RED3}")
    A("s_waitcnt lgkmcnt(0)")
    A("s_barrier")
    A("s_cmp_lg_u32 s3, 0")
    A("s_cbranch_scc1 L_fin")
    for i in range(8): A(f"ds_read_b64 v[{T+2*i}:{T+2*i+1}], v{RING+13} offset:{L_RED3+1024*i}")
    A("s_waitcnt lgkmcnt(0)")
    for i in (2, 4, 6):
        A(f"v_pk_add_f32 v[{T}:{T+1}], v[{T}:{T+1}], v[{T+2*i}:{T+2*i+1}]")
        A(f"v_pk_add_f32 v[{T+2}:{T+3}], v[{T+2}:{T+3}], v[{T+2*i+2}:{T+2*i+3}]")
    A(f"v_cvt_pk_bf16_f32 v{T+4}, v{T}, v{T+1}"); A(f"v_cvt_pk_bf16_f32 v{T+5}, v{T+2}, v{T+3}")
    A(f"v_lshlrev_b32 v{T}, 16, v{T+4}"); A(f"v_and_b32 v{T+1}, 0xffff0000, v{T+4}")
    A(f"v_lshlrev_b32 v{T+2}, 16, v{T+5}"); A(f"v_and_b32 v{T+3}, 0xffff0000, v{T+5}")
    import struct, math
    f2u = lambda f: struct.unpack("<I", struct.pack("<f", f))[0]
    c1 = -2*math.sqrt(2/math.pi)*math.log2(math.e); c2 = c1*0.044715
    A(f"s_mov_b32 s42, {f2u(c2):#x}"); A(f"v_mov_b32 v{T+8}, {f2u(c1):#x}")
    for t in range(2):
        A(f"v_mul_f32 v{T+6+t}, v{T+t}, v{T+t}")
    for t in range(2):
        A(f"v_fma_f32 v{T+6+t}, v{T+6+t}, s42, v{T+8}")
    for t in range(2):
        A(f"v_mul_f32 v{T+6+t}, v{T+6+t}, v{T+t}")
    for t in range(2): A(f"v_exp_f32 v{T+6+t}, v{T+6+t}")
    for t in range(2): A(f"v_add_f32 v{T+6+t}, 1.0, v{T+6+t}")
    for t in range(2): A(f"v_rcp_f32 v{T+6+t}, v{T+6+t}")
    for t in range(2): A(f"v_mul_f32 v{T+t}, v{T+t}, v{T+6+t}")
    A(f"v_cvt_pk_bf16_f32 v{T+4}, v{T}, v{T+1}")
    A(f"v_lshlrev_b32 v{T}, 16, v{T+4}"); A(f"v_and_b32 v{T+1}, 0xffff0000, v{T+4}")
    A(f"v_mul_f32 v{T}, v{T}, v{T+2}"); A(f"v_mul_f32 v{T+1}, v{T+1}, v{T+3}")
    A(f"v_cvt_pk_bf16_f32 v{T+4}, v{T}, v{T+1}")
    A(f"v_min_u32 v{T+4}, -2, v{T+4}")
    A(f"buffer_store_dword v{T+4}, v{RING+15}, s[24:27], s56 offen sc1")
    g.stamp(9)
    A("s_branch L_fin")

    g.lab("L_down")
    A(f"s_mul_i32 s42, s3, 3584"); A(f"s_add_u32 s42, s42, {ACT}")
    A(f"s_sub_u32 s43, {ACT+54*512}, s42")
    g.srd(16, 86, 87, "s42", "s43")
    A(f"v_bfe_u32 v{T}, v0, 4, 2"); A(f"v_lshlrev_b32 v{T}, 7, v{T}")
    A(f"v_and_b32 v{T+1}, 7, v0"); A(f"v_lshl_add_u32 v{T}, v{T+1}, 4, v{T}")
    A("s_lshl_b32 s42, s3, 10")
    A(f"v_add_u32 v{T+2}, s42, v{V14}")
    A(f"v_and_b32 v{T+3}, 0x37, v{V_LANE}"); A(f"v_lshlrev_b32 v{T+3}, 4, v{T+3}")
    A(f"v_bfe_u32 v{T+4}, v0, 3, 1"); A(f"v_lshl_add_u32 v{T+3}, v{T+4}, 3, v{T+3}")
    A("s_movk_i32 s42, 1280")
    A(f"v_mul_lo_u32 v{T+5}, v{T+1}, s42")
    A(f"v_bfe_u32 v{T+6}, v0, 4, 2"); A(f"v_lshl_add_u32 v{T+5}, v{T+6}, 3, v{T+5}")
    A(f"v_lshl_add_u32 v{T+5}, v{T+4}, 2, v{T+5}")
    A("s_lshl_b32 s42, s45, 5")
    A(f"v_add_u32 v{T+5}, s42, v{T+5}")
    A(f"s_mov_b32 s40, {HBUF}")
    A("s_cmp_lg_u32 s3, 0")
    A("s_cbranch_scc1 L_dn1")
    poll("hd", [(f"buffer_load_dword v{T+7}, v{T+5}, s[24:27], s40 offen sc1", T+7, 1)])
    g.lab("L_dn1")
    AF = RING
    poll("ac", [(f"buffer_load_dwordx4 v[{AF+4*i}:{AF+4*i+3}], v{T}, s[16:19], 0 offen offset:{512*i} sc1", AF+4*i, 4) for i in range(7)])
    g.stamp(8)
    for i in range(7):
        c = "0" if i == 0 else f"v[{ACC}:{ACC+3}]"
        A(f"v_mfma_f32_16x16x32_bf16 v[{ACC}:{ACC+3}], v[{RB+4*i}:{RB+4*i+3}], v[{AF+4*i}:{AF+4*i+3}], {c}")
    A(f"ds_write_b128 v{T+2}, v[{ACC}:{ACC+3}] offset:{L_RED3}")
    A("s_waitcnt lgkmcnt(0)")
    A("s_barrier")
    A("s_cmp_lg_u32 s3, 0")
    A("s_cbranch_scc1 L_fin")
    for i in range(8): A(f"ds_read_b64 v[{VP+2*i}:{VP+2*i+1}], v{T+3} offset:{L_RED3+1024*i}")
    for i in range(1, 8):
        A(f"s_waitcnt lgkmcnt({7-i})")
        A(f"v_pk_add_f32 v[{VP}:{VP+1}], v[{VP}:{VP+1}], v[{VP+2*i}:{VP+2*i+1}]")
    A(f"v_cvt_pk_bf16_f32 v{VP}, v{VP}, v{VP+1}")
    A(f"v_lshlrev_b32 v{VP+1}, 16, v{VP}"); A(f"v_and_b32 v{VP+2}, 0xffff0000, v{VP}")
    A(f"v_lshlrev_b32 v{VP+3}, 16, v{T+7}"); A(f"v_and_b32 v{VP+4}, 0xffff0000, v{T+7}")
    A(f"v_add_f32 v{VP+1}, v{VP+1}, v{VP+3}"); A(f"v_add_f32 v{VP+2}, v{VP+2}, v{VP+4}")
    A(f"v_cvt_pk_bf16_f32 v{VP}, v{VP+1}, v{VP+2}")
    A(f"buffer_store_dword v{VP}, v{T+5}, s[32:35], 0 offen")
    g.stamp(9)
    g.lab("L_fin")
    if g.ts:
        A("s_getreg_b32 s42, hwreg(HW_REG_XCC_ID)")
        A(f"v_writelane_b32 v{V_TS}, s42, 14")
        A(f"v_writelane_b32 v{V_TS}, s44, 15")
        A("s_waitcnt vmcnt(0)")
        g.stamp(10)
        A("s_lshl_b32 s42, s2, 3"); A("s_add_u32 s42, s42, s3"); A("s_lshl_b32 s42, s42, 6"); A(f"s_add_u32 s42, s42, {TSOFF}")
        A(f"v_lshl_add_u32 v{T}, v{V_LANE}, 2, s42")
        A("s_mov_b64 exec, 0xffff")
        A(f"global_store_dword v{T}, v{V_TS}, s[86:87]")
    g.lab("L_end")
    A("s_endpgm")
    body, added = hazard.fix(L)
    body += ['.section .rodata,"a"', ".p2align 6", f".amdhsa_kernel {KN}",
             "  .amdhsa_next_free_vgpr 256", "  .amdhsa_next_free_sgpr 96", "  .amdhsa_accum_offset 256",
             "  .amdhsa_group_segment_fixed_size 0", "  .amdhsa_kernarg_size 96", "  .amdhsa_user_sgpr_count 2",
             "  .amdhsa_user_sgpr_kernarg_segment_ptr 1", "  .amdhsa_system_sgpr_workgroup_id_x 1", ".end_amdhsa_kernel"]
    return "\n".join(body) + "\n"

if __name__ == "__main__":
    out = sys.argv[1]
    kw = eval("dict(" + (sys.argv[2] if len(sys.argv) > 2 else "") + ")")
    open(out, "w").write(gen(**kw))
```

```python
import sys, struct, math
import hazard
KN = "sequential_preLN__mha_block_cached__geglu_ffn__decode_kernel"

HEADER = """; Fused pre-LN attention (KV-cache decode) + GEGLU FFN, one launch, 256 workgroups x 512 threads.
"""
OB = 0
AP = 0x10000
ACT = 0x20000
WSSZ = 0x30000
TSOFF = 0x200000
DUMP = 0x300000
L_RED = 0
L_QB = 4096
L_ST = 6144
L_XN = 8192
XPITCH = 1344
L_RED3 = 20480
L_W = 32768
LDS_BYTES = 98304
V_LANE, V_KV = 1, 2
V_Q = 4
V_C16 = 3
E = 8
VP = 40
VS = 56
VH = 64
ACC = 72
RA = 80
WF = 80
RB = 160
T = 224
V_RW = T + 22
V_L8 = T + 23
V_OS = T + 24
V_RS = T + 25
V_L16 = T + 26
V_CNT = T + 27
V_TS = 255
LOG2E = 0x3fb8aa3b
SCALE = 0x3db504f3
OOB = 0x7ffffff0
f2u = lambda f: struct.unpack("<I", struct.pack("<f", f))[0]

class G:
    def __init__(s, **kw):
        s.L = []; s.q = []; s.uid = 0
        d = dict(D=3, DV=3, DS=3, GS=0, NPRE=16, KA=3, KB=0, KI=1, XV=4, ts=0, dump=0, pol="nt", qpol="", fpol="nt", sleep=1,
                 nof=0, hperm=0, rot=1, fspread=1, frot=0, FB=0, pst=0, flate=0, QD=20, pf=0, ppol="", fpost=0)
        d.update(kw)
        for k, v in d.items(): setattr(s, k, v)
    def A(s, t): s.L.append("  " + t)
    def lab(s, t): s.L.append(t + ":")
    def vm(s, t, tag=None):
        s.A(t); s.uid += 1
        tag = tag or f"_{s.uid}"
        s.q.append(tag); return tag
    def wait(s, tag):
        if tag not in s.q: return
        i = s.q.index(tag); n = len(s.q) - 1 - i
        assert n <= 63, n
        s.A(f"s_waitcnt vmcnt({n})"); s.q = s.q[i+1:]
    def stamp(s, k):
        if not s.ts: return
        s.A("s_memrealtime s[88:89]"); s.A("s_waitcnt lgkmcnt(0)"); s.A(f"v_writelane_b32 v{V_TS}, s88, {k}")
    def srd(s, d, lo, hi, off, nrec):
        s.A(f"s_add_u32 s{d}, s{lo}, {off}"); s.A(f"s_addc_u32 s{d+1}, s{hi}, 0")
        s.A(f"s_mov_b32 s{d+2}, {nrec}"); s.A(f"s_mov_b32 s{d+3}, 0x00020000")

def bf16r(g, dst, src):
    g.A(f"v_cvt_pk_bf16_f32 v{dst}, v{src}, v{src}")
    g.A(f"v_and_b32 v{dst}, 0xffff0000, v{dst}")

def wave_allreduce(g, rs, op):
    for sh in (8, 4, 2, 1):
        for r in rs: g.A(f"{op}_dpp v{r}, v{r}, v{r} row_ror:{sh} row_mask:0xf bank_mask:0xf")
    for sw in ("16", "32"):
        for k, r in enumerate(rs): g.A(f"v_mov_b32 v{T+28+k}, v{r}")
        for k, r in enumerate(rs): g.A(f"v_permlane{sw}_swap_b32 v{r}, v{T+28+k}")
        for k, r in enumerate(rs): g.A(f"{op} v{r}, v{r}, v{T+28+k}")

def ln_stats(g, vm, vr):
    g.A(f"v_readfirstlane_b32 s42, v{T}")
    s1, s2, d = T+10, T+11, T+12
    g.A(f"v_subrev_f32 v{s1}, s42, v{T}")
    g.A(f"v_mul_f32 v{s2}, v{s1}, v{s1}")
    for k in range(1, 10):
        g.A(f"v_subrev_f32 v{d}, s42, v{T+k}")
        g.A(f"v_add_f32 v{s1}, v{s1}, v{d}")
        g.A(f"v_fmac_f32 v{s2}, v{d}, v{d}")
    wave_allreduce(g, [s1, s2], "v_add_f32")
    g.A("s_mov_b32 s43, 0x3acccccd")
    g.A(f"v_mul_f32 v{s1}, s43, v{s1}")
    g.A(f"v_mul_f32 v{s2}, s43, v{s2}")
    g.A(f"v_fma_f32 v{s2}, -v{s1}, v{s1}, v{s2}")
    g.A(f"v_max_f32 v{s2}, 0, v{s2}")
    g.A(f"v_add_f32 v{s1}, s42, v{s1}")
    bf16r(g, vm, s1)
    bf16r(g, s2, s2)
    g.A(f"v_add_f32 v{s2}, 0x3727c5ac, v{s2}")
    bf16r(g, s2, s2)
    g.A(f"v_sqrt_f32 v{s2}, v{s2}")
    bf16r(g, s2, s2)
    g.A(f"v_rcp_f32 v{vr}, v{s2}")

def unpack(g, dst, src):
    g.A(f"v_lshlrev_b32 v{dst}, 16, v{src}"); g.A(f"v_and_b32 v{dst+1}, 0xffff0000, v{src}")

def red128_a(g):
    a = ACC
    for t in range(4): g.A(f"v_permlane32_swap_b32 v{a+t}, v{a+t+4}")
    for t in range(4): g.A(f"v_add_f32 v{a+t}, v{a+t}, v{a+t+4}")
    g.A(f"v_permlane16_swap_b32 v{a}, v{a+2}")
    g.A(f"v_permlane16_swap_b32 v{a+1}, v{a+3}")
    g.A(f"v_add_f32 v{a}, v{a}, v{a+2}")
    g.A(f"v_add_f32 v{a+1}, v{a+1}, v{a+3}")
    g.A(f"ds_write_b64 v{V_RW}, v[{a}:{a+1}] offset:{L_RED}")
    g.A("s_waitcnt lgkmcnt(0)")
    g.A("s_barrier")
def red128_b(g, dst):
    for i in range(8):
        g.A(f"ds_read_b64 v[{T+2*i}:{T+2*i+1}], v{V_L8} offset:{L_RED + 512*i}")
    for i in range(1, 8):
        g.A(f"s_waitcnt lgkmcnt({7-i})")
        g.A(f"v_pk_add_f32 v[{T}:{T+1}], v[{T}:{T+1}], v[{T+2*i}:{T+2*i+1}]")
    g.A(f"v_cvt_pk_bf16_f32 v{dst}, v{T}, v{T+1}")

def gen(**kw):
    g = G(**kw); A = g.A; D = g.D
    L = g.L
    for ln in HEADER.splitlines(): L.append(ln)
    L.append(f"; @launch grid=(256,1,1) block=(512,1,1) lds={LDS_BYTES}")
    L.append('.amdgcn_target "amdgcn-amd-amdhsa--gfx950"')
    L.append(".text"); L.append(f".globl {KN}"); L.append(".p2align 8"); L.append(f".type {KN},@function"); L.append(f"{KN}:")
    A("s_cmp_ge_u32 s2, 256")
    A("s_cbranch_scc1 L_end")
    A("s_load_dwordx16 s[64:79], s[0:1], 0")
    A("s_load_dwordx8 s[80:87], s[0:1], 64")
    if g.ts: A(f"v_mov_b32 v{V_TS}, 0")
    A("v_lshrrev_b32 v8, 6, v0")
    A(f"v_and_b32 v{V_LANE}, 63, v0")
    A("v_readfirstlane_b32 s3, v8")
    A(f"v_and_b32 v{V_C16}, 15, v0")
    A("s_lshr_b32 s38, s2, 5")
    A("s_and_b32 s39, s2, 31")
    if g.hperm:
        A("s_and_b32 s39, s2, 7"); A("s_lshl_b32 s39, s39, 2"); A("s_bfe_u32 s42, s2, 0x20003"); A("s_or_b32 s39, s39, s42")
        A("s_lshl_b32 s2, s38, 5"); A("s_or_b32 s2, s2, s39")
    A(f"v_lshlrev_b32 v{V_L16}, 4, v{V_LANE}")
    A("s_lshl_b32 s42, s3, 12")
    A(f"v_add_u32 v{V_KV}, s42, v{V_L16}")
    A(f"v_bfe_u32 v9, v0, 4, 2")
    A("s_mul_i32 s42, s3, 80")
    A("v_add_u32 v10, s42, v9")
    A(f"v_lshlrev_b32 v11, 4, v{V_C16}")
    A("v_lshl_add_u32 v12, v10, 13, v11")
    if g.rot: A("s_mul_i32 s61, s38, 5"); A("s_lshr_b32 s61, s61, 1")
    else: A("s_mov_b32 s61, 0")
    A(f"v_add_u32 v13, s61, v{V_C16}"); A("v_add_u32 v14, 16, v13")
    for r in (13, 14):
        A(f"v_subrev_u32 v16, 20, v{r}"); A(f"v_min_u32 v{r}, v{r}, v16")
        A(f"v_lshl_add_u32 v{r}, v{r}, 2, v10"); A(f"v_lshlrev_b32 v{r}, 1, v{r}")
    A("s_lshl_b32 s92, s61, 15")
    A(f"v_lshlrev_b32 v15, 2, v{V_LANE}")
    A(f"v_lshlrev_b32 v{V_L8}, 3, v{V_LANE}")
    A("s_mul_i32 s47, s38, 1280")
    A("s_lshl_b32 s48, s39, 8")
    A(f"s_sub_u32 s49, {640*8192}, s48")
    A("s_lshl_b32 s46, s2, 20")
    A("s_waitcnt lgkmcnt(0)")
    g.stamp(0)
    g.srd(28, 64, 65, "s47", 1280)
    X4, X1, XM0, XM1 = T+16, T+20, T+21, T+15
    g.vm(f"buffer_load_dwordx4 v[{X4}:{X4+3}], v{V_L16}, s[28:31], 0 offen")
    g.vm(f"buffer_load_dword v{X1}, v15, s[28:31], 0 offen offset:1024")
    g.vm(f"buffer_load_ushort v{XM0}, v13, s[28:31], 0 offen")
    g.vm(f"buffer_load_ushort v{XM1}, v14, s[28:31], 0 offen", "x")
    g.srd(4, 66, 67, "s46", 1 << 20)
    g.srd(16, 70, 71, "s48", "s49")
    buf = lambda m: RB + 4*(m % 16)
    st = dict(m=0)
    def issue_next():
        m = st["m"]; n = m & 127
        win = n >> 2; imm = (n & 3) * 1024
        if win == 0: so = "0"
        else:
            A(f"s_mov_b32 s42, {win*32768}"); so = "s42"
        srd = "s[4:7]" if m < 128 else "s[8:11]"
        g.vm(f"buffer_load_dwordx4 v[{buf(m)}:{buf(m)+3}], v{V_KV}, {srd}, {so} offen offset:{imm} {g.pol}", f"m{m}")
        st["m"] += 1
    for _ in range(g.KA): issue_next()
    def wq_issue(j):
        g.vm(f"buffer_load_dwordx4 v[{RA+4*j}:{RA+4*j+3}], v12, s[16:19], s92 offen {g.qpol}", f"wq{j}")
        if j < 19:
            A("s_add_u32 s92, s92, 32768"); A(f"s_cmp_lg_u32 s92, {20*32768}"); A("s_cselect_b32 s92, s92, 0")
    for j in range(g.QD): wq_issue(j)
    A("s_mov_b32 s44, 0"); A("s_mov_b32 s45, 0"); A("s_mov_b32 s46, 0"); A("s_mov_b32 s57, 0"); A("s_mov_b32 s60, 0")
    A("s_mov_b32 s58, s72"); A("s_mov_b32 s59, s73"); A(f"s_mov_b32 s56, {OOB}")
    A("s_mov_b32 s93, 0"); A("s_mov_b32 s94, 0"); A("s_mov_b32 s95, 0")
    A(f"v_mov_b32 v{V_RS}, {OOB}")
    A("s_lshl_b32 s43, s39, 3"); A("s_add_u32 s43, s43, s38")
    A(f"v_and_b32 v16, 7, v0")
    A(f"v_bfe_u32 v17, v0, 3, 1")
    A("s_cmp_lt_u32 s39, 10")
    A("s_cbranch_scc0 L_r1")
    A("s_mov_b32 s44, 1"); A("s_movk_i32 s46, 1280"); A("s_movk_i32 s60, 256")
    A("s_cmp_ge_u32 s43, 40"); A("s_cselect_b32 s61, 1, 0")
    A("s_mul_i32 s42, s61, 40"); A("s_sub_u32 s45, s43, s42")
    A("s_lshl_b32 s57, s61, 11"); A("s_lshl_b32 s42, s3, 8"); A("s_add_u32 s57, s57, s42")
    A("s_mul_i32 s56, s61, 20480"); A("s_lshl_b32 s42, s45, 6"); A("s_add_u32 s56, s56, s42"); A(f"s_add_u32 s56, s56, {AP}")
    A("s_lshl_b32 s93, s61, 11"); A("s_lshl_b32 s42, s38, 8"); A("s_add_u32 s93, s93, s42"); A("s_lshl_b32 s42, s3, 5"); A("s_add_u32 s93, s93, s42")
    A(f"s_mov_b32 s94, {4096*1280}"); A("s_lshr_b32 s95, s45, 3"); A("s_lshl_b32 s95, s95, 8"); A("s_mov_b32 s96, 32")
    A("s_movk_i32 s42, 2560")
    A(f"v_mul_lo_u32 v18, v16, s42"); A("v_lshl_add_u32 v18, v9, 4, v18")
    A("v_cmp_eq_u32 vcc, 0, v17")
    A("s_branch L_r3")
    g.lab("L_r1")
    A("v_lshrrev_b32 v18, 1, v9"); A("v_lshlrev_b32 v19, 7, v18")
    A("v_and_b32 v20, 0x18, v0"); A("v_cmp_eq_u32 vcc, 0, v20")
    A("s_cmp_lt_u32 s39, 24")
    A("s_cbranch_scc0 L_r2")
    A("s_sub_u32 s45, s43, 80")
    A("s_movk_i32 s46, 3456")
    A("s_bitcmp1_b32 s3, 0")
    A("s_cselect_b32 s58, s78, s76"); A("s_cselect_b32 s59, s79, s77")
    A("s_lshr_b32 s42, s3, 1"); A("s_mul_i32 s57, s42, 160")
    A("s_mul_i32 s93, s42, 20"); A("s_mul_i32 s42, s38, 80"); A("s_add_u32 s93, s93, s42")
    A(f"s_mov_b32 s94, {640*3456}"); A("s_lshr_b32 s95, s45, 3"); A("s_lshl_b32 s95, s95, 8"); A("s_mov_b32 s96, 20")
    A("s_cmp_lt_u32 s45, 108")
    A("s_cbranch_scc0 L_r4")
    A("s_mov_b32 s44, 2"); A("s_movk_i32 s60, 160")
    A("s_lshl_b32 s56, s45, 8"); A(f"s_add_u32 s56, s56, {ACT}")
    A("v_lshl_add_u32 v18, v16, 4, v19")
    A("s_branch L_r3")
    g.lab("L_r2")
    A("s_cmp_lt_u32 s39, 29")
    A("s_cbranch_scc0 L_r4")
    A("s_mov_b32 s44, 3"); A("s_movk_i32 s46, 1280")
    A("s_sub_u32 s45, s43, 192")
    A("s_mov_b32 s58, s80"); A("s_mov_b32 s59, s81")
    A("s_mul_i32 s57, s3, 224")
    A("s_sub_u32 s60, 1728, s57"); A("s_min_u32 s60, s60, 224")
    A("s_mul_i32 s93, s3, 27"); A("s_mul_i32 s42, s38, 216"); A("s_add_u32 s93, s93, s42")
    A(f"s_mov_b32 s94, {1728*1280}"); A("s_lshr_b32 s95, s45, 3"); A("s_lshl_b32 s95, s95, 8"); A("s_mov_b32 s96, 28")
    A("s_branch L_r4")
    g.lab("L_r3")
    A("v_add_u32 v18, s56, v18")
    A(f"v_cndmask_b32 v{V_RS}, v{V_RS}, v18, vcc")
    g.lab("L_r4")
    A("s_mul_i32 s42, s57, s46"); A("s_lshl_b32 s43, s45, 5"); A("s_add_u32 s42, s42, s43")
    A("s_mul_i32 s60, s60, s46"); A("s_sub_u32 s62, s60, s43"); A("s_cmp_eq_u32 s60, 0"); A("s_cselect_b32 s60, 0, s62")
    g.srd(20, 58, 59, "s42", "s60")
    V_FO = E + 31
    V_PF = E + 29
    if g.pf:
        A("s_mul_i32 s42, s93, s46"); A("s_add_u32 s42, s42, s95")
        A("s_sub_u32 s43, s94, s42"); A("s_mul_i32 s62, s96, s46"); A("s_min_u32 s43, s43, s62")
        A("s_cmp_eq_u32 s94, 0"); A("s_cselect_b32 s43, 0, s43")
        g.srd(12, 58, 59, "s42", "s43")
        A(f"v_mul_lo_u32 v18, v9, s46")
        A(f"v_lshl_add_u32 v{V_PF}, v{V_C16}, 4, v18")
        A("s_lshl_b32 s94, s46, 2"); A("s_mov_b32 s93, 0")
    def pfl():
        g.vm(f"buffer_load_dword v{E+30}, v{V_PF}, s[12:15], s93 offen {g.ppol}")
        A("s_add_u32 s93, s93, s94")
    A(f"v_lshrrev_b32 v18, 1, v{V_LANE}")
    A("v_mul_lo_u32 v18, v18, s46")
    A("v_and_b32 v19, 1, v0")
    A(f"v_lshl_add_u32 v{V_FO}, v19, 4, v18")
    A("s_lshl_b32 s46, s46, 5")
    A("s_lshl_b32 s91, s3, 13"); A(f"s_add_u32 s91, s91, {L_W}")
    if g.frot: A("s_and_b32 s90, s45, 3"); A("s_lshl_b32 s90, s90, 1")
    else: A("s_mov_b32 s90, 0")
    def fdma(track=True):
        if g.nof: return
        A("s_lshl_b32 s47, s90, 10"); A("s_add_u32 m0, s47, s91"); A("s_mul_i32 s47, s90, s46")
        ins = f"buffer_load_dwordx4 v{V_FO}, s[20:23], s47 offen {g.fpol} lds"
        if track: g.vm(ins)
        else: A(ins)
        A("s_add_u32 s90, s90, 1"); A("s_and_b32 s90, s90, 7")
    if not g.fspread and not g.flate:
        for i in range(8): fdma()
    for _ in range(g.KB): issue_next()
    A("s_lshl_b32 s42, s2, 20")
    g.srd(8, 68, 69, "s42", 1 << 20)
    g.srd(24, 86, 87, 0, WSSZ)
    g.srd(32, 82, 83, 0, 10240)
    A("s_lshl_b32 s42, s38, 13"); A("s_add_u32 s42, s42, s48")
    A(f"v_add_u32 v16, s42, v15")
    A(f"v_mov_b32 v17, {OOB}")
    A("v_and_b32 v19, 0x1c3, v0"); A("v_cmp_eq_u32 vcc, 0, v19")
    A(f"v_cndmask_b32 v{V_OS}, v17, v16, vcc")
    A(f"v_cmp_gt_u32 vcc, 64, v0")
    A(f"v_cndmask_b32 v{V_RS}, v17, v{V_RS}, vcc")
    for k in range(4): A(f"v_mov_b32 v{20+k}, -1")
    g.vm(f"buffer_store_dwordx4 v[20:23], v{V_OS}, s[24:27], 0 offen sc1")
    g.vm(f"buffer_store_dwordx4 v[20:23], v{V_RS}, s[24:27], 0 offen sc1", "clr")
    A("s_lshl_b32 s42, s3, 9")
    A(f"v_lshlrev_b32 v16, 5, v{V_C16}")
    A("v_lshl_add_u32 v16, v9, 3, v16")
    A(f"v_add_u32 v{V_RW}, s42, v16")
    A("s_mov_b32 s50, 0xcccccccc"); A("s_mov_b32 s51, 0xcccccccc")
    A("s_mov_b32 s52, 0xaaaaaaaa"); A("s_mov_b32 s53, 0xaaaaaaaa")
    A(f"s_mov_b32 s54, {SCALE}"); A(f"s_mov_b32 s55, {LOG2E}")
    for e in range(8): A(f"v_mov_b32 v{ACC+e}, 0")
    g.wait("x")
    if g.pst: g.stamp(11)
    for k, r in enumerate([X4, X4+1, X4+2, X4+3, X1]): unpack(g, T+2*k, r)
    VM, VR = T+13, T+14
    ln_stats(g, VM, VR)
    MLO0, MHI0, MLO1, MHI1 = T+16, T+17, T+18, T+19
    for src, lo, hi in ((XM0, MLO0, MHI0), (XM1, MLO1, MHI1)):
        A(f"v_lshlrev_b32 v{src}, 16, v{src}")
        A(f"v_sub_f32 v{src}, v{src}, v{VM}")
        bf16r(g, src, src)
        A(f"v_mul_f32 v{src}, v{src}, v{VR}")
        A(f"v_cvt_pk_bf16_f32 v{lo}, v{src}, 0")
        A(f"v_lshlrev_b32 v{hi}, 16, v{lo}")
    def pv(b, lo, hi, j):
        for t in range(4):
            A(f"v_dot2c_f32_bf16_dpp v{ACC+2*t}, v{lo}, v{b+t} row_newbcast:{j} row_mask:0xf bank_mask:0xf")
            A(f"v_dot2c_f32_bf16_dpp v{ACC+2*t+1}, v{hi}, v{b+t} row_newbcast:{j} row_mask:0xf bank_mask:0xf")
    for j in range(20):
        g.wait(f"wq{j}")
        if g.pst and j == 0: g.stamp(12)
        if g.pst and j == 10: g.stamp(13)
        if j + g.QD < 20: wq_issue(j + g.QD)
        elif g.KI and j % g.KI == 0 and st["m"] < g.NPRE: issue_next()
        if j < 16: pv(RA+4*j, MLO0, MHI0, j)
        else: pv(RA+4*j, MLO1, MHI1, j-16)
    while st["m"] < g.NPRE: issue_next()
    g.stamp(1)
    red128_a(g)
    red128_b(g, T+16)
    A("s_lshl_b32 s42, s3, 8")
    A(f"v_lshl_add_u32 v{T+17}, v{V_LANE}, 2, s42")
    A(f"v_lshl_add_u32 v{T+18}, v{V_C16}, 4, s42")
    A(f"ds_write_b32 v{T+17}, v{T+16} offset:{L_QB}")
    A("s_waitcnt lgkmcnt(0)")
    A(f"ds_read_b128 v[{V_Q}:{V_Q+3}], v{T+18} offset:{L_QB}")
    if g.dump:
        A(f"s_lshl_b32 s42, s2, 8"); A(f"s_add_u32 s42, s42, {DUMP}")
        A(f"v_add_u32 v{T+6}, s42, v15")
        A("s_cmp_lg_u32 s3, 0"); A("s_cbranch_scc1 L_nd1")
        A(f"global_store_dword v{T+6}, v{T+16}, s[86:87]")
        g.lab("L_nd1")
    A("s_waitcnt lgkmcnt(0)")
    g.stamp(2)

    def kdot(b, j):
        A(f"v_dot2_f32_bf16 v{VP+j}, v{b}, v{V_Q}, 0")
        for t in range(1, 4): A(f"v_dot2_f32_bf16 v{VP+j}, v{b+t}, v{V_Q+t}, v{VP+j}")
    def kfinish():
        P = VP
        for a in range(8): A(f"v_add_f32_dpp v{P+a}, v{P+a}, v{P+a} row_shl:8 row_mask:0xf bank_mask:0x3")
        for a in range(8): A(f"v_add_f32_dpp v{P+a}, v{P+a+8}, v{P+a+8} row_shr:8 row_mask:0xf bank_mask:0xc")
        for a in range(4): A(f"v_add_f32_dpp v{P+a}, v{P+a}, v{P+a} row_shl:4 row_mask:0xf bank_mask:0x5")
        for a in range(4): A(f"v_add_f32_dpp v{P+a}, v{P+a+4}, v{P+a+4} row_shr:4 row_mask:0xf bank_mask:0xa")
        for a in range(4): A(f"v_add_f32_dpp v{P+a}, v{P+a}, v{P+a} quad_perm:[2,3,0,1] row_mask:0xf bank_mask:0xf")
        for a in range(2): A(f"v_cndmask_b32 v{P+a}, v{P+a}, v{P+a+2}, s[50:51]")
        for a in range(2): A(f"v_add_f32_dpp v{P+a}, v{P+a}, v{P+a} quad_perm:[1,0,3,2] row_mask:0xf bank_mask:0xf")
        for a in range(7): A(f"v_mov_b32 v{VS+a}, v{VS+a+1}")
        A(f"v_cndmask_b32 v{P}, v{P}, v{P+1}, s[52:53]")
        bf16r(g, P, P)
        A(f"v_mul_f32 v{P}, s54, v{P}")
        bf16r(g, VS+7, P)
    def vshift():
        for a in range(7):
            A(f"v_mov_b32 v{VS+a}, v{VS+a+1}"); A(f"v_mov_b32 v{VH+a}, v{VH+a+1}")
    vcons = lambda b, j: pv(b, VS, VH, j)
    def ugroup(m0, depth, cons, extras={}):
        for m in range(m0, m0 + 16):
            g.wait(f"m{m}")
            while st["m"] <= m + depth and st["m"] < 256: issue_next()
            for e in extras.get(m - m0, []): e()
            cons(buf(m), m - m0)
    def lgroups(name, g0, g1, depth, srd, cons, fin, dma=False):
        assert st["m"] == 16*g0 + depth, (st["m"], g0, depth)
        assert g.q[len(g.q)-(depth-1):] == [f"m{16*g0+1+i}" for i in range(depth-1)], g.q
        A(f"s_mov_b32 s40, {(g0 & 7)*131072}")
        g.lab(name)
        g.q = [f"r{i}" for i in range(depth)]
        cur = dict(win=0, n=depth)
        def iss():
            jn = cur["n"]; win = jn >> 2
            if win != cur["win"]:
                A(f"s_add_u32 s42, s40, {win*32768}"); cur["win"] = win
            so = "s40" if win == 0 else "s42"
            g.vm(f"buffer_load_dwordx4 v[{buf(jn)}:{buf(jn)+3}], v{V_KV}, {srd}, {so} offen offset:{(jn&3)*1024} {g.pol}", f"r{jn}")
            cur["n"] += 1
        for j in range(16):
            g.wait(f"r{j}")
            while cur["n"] <= j + depth + (g.FB if dma and j == 0 else 0): iss()
            if dma and j == 0: dma()
            cons(buf(j), j)
        assert g.q == [f"r{16+i}" for i in range(depth)], g.q
        fin()
        A("s_add_u32 s40, s40, 131072")
        A(f"s_cmp_lt_u32 s40, {(((g1-1) & 7)+1)*131072}")
        A(f"s_cbranch_scc1 {name}")
        st["m"] = 16*g1 + depth
        g.q = [f"m{16*g1+i}" for i in range(depth)]

    sp = g.fspread and not g.nof and not g.flate
    xk = fdma if sp else (pfl if g.pf == 1 else None)
    xv = pfl if g.pf == 2 else None
    ugroup(0, D, kdot, {8: [xk]} if xk else {}); kfinish()
    assert "clr" not in g.q
    A("s_cmp_lg_u32 s3, 0")
    A("s_cbranch_scc1 L_nocnt")
    A(f"v_mov_b32 v{T+4}, 0"); A(f"v_mov_b32 v{T+5}, 1")
    A("s_mov_b64 exec, 1")
    A(f"global_atomic_add v{T+4}, v{T+5}, s[84:85] sc1")
    A("s_mov_b64 exec, -1")
    g.lab("L_nocnt")
    g.stamp(3)
    lgroups("L_kloop", 1, 7, D, "s[4:7]", kdot, kfinish, xk)
    if not g.pst: g.stamp(13)
    def boost():
        for _ in range(g.FB): issue_next()
    ugroup(112, D, kdot, {0: [boost, xk]} if xk else ({8: [xv]} if xv else {}))
    for _ in range(g.XV): issue_next()
    A(f"v_mov_b32 v{T+20}, 0")
    g.vm(f"global_load_dword v{V_CNT}, v{T+20}, s[84:85] sc1")
    kfinish()
    def trreads():
        A(f"v_bfe_u32 v{T+2}, v0, 4, 2"); A(f"v_lshlrev_b32 v{T+2}, 8, v{T+2}")
        A(f"v_bfe_u32 v{T+3}, v0, 2, 2"); A(f"v_lshl_add_u32 v{T+2}, v{T+3}, 5, v{T+2}")
        A(f"v_and_b32 v{T+3}, 3, v0"); A(f"v_lshl_add_u32 v{T+2}, v{T+3}, 3, v{T+2}")
        A("s_lshl_b32 s42, s3, 13"); A(f"v_add_u32 v{T+2}, s42, v{T+2}")
        for i in range(8):
            A(f"ds_read_b64_tr_b16 v[{WF+4*i}:{WF+4*i+1}], v{T+2} offset:{L_W+1024*i}")
            A(f"ds_read_b64_tr_b16 v[{WF+4*i+2}:{WF+4*i+3}], v{T+2} offset:{L_W+1024*i+128}")
    if not g.flate: trreads()
    g.stamp(4)
    m, l = T, T+1
    A(f"v_max3_f32 v{m}, v{VS}, v{VS+1}, v{VS+2}")
    A(f"v_max3_f32 v{m}, v{m}, v{VS+3}, v{VS+4}")
    A(f"v_max3_f32 v{m}, v{m}, v{VS+5}, v{VS+6}")
    A(f"v_max_f32 v{m}, v{m}, v{VS+7}")
    wave_allreduce(g, [m], "v_max_f32")
    for a in range(8):
        A(f"v_sub_f32 v{VS+a}, v{VS+a}, v{m}")
        A(f"v_mul_f32 v{VS+a}, s55, v{VS+a}")
    for a in range(8): A(f"v_exp_f32 v{VS+a}, v{VS+a}")
    A(f"v_add_f32 v{l}, v{VS}, v{VS+1}")
    for a in range(2, 8): A(f"v_add_f32 v{l}, v{l}, v{VS+a}")
    wave_allreduce(g, [l], "v_add_f32")
    A("s_lshl_b32 s42, s3, 3")
    A(f"v_mov_b32 v{T+2}, s42")
    A(f"ds_write_b64 v{T+2}, v[{m}:{l}] offset:{L_ST}")
    A("s_waitcnt lgkmcnt(0)")
    A("s_barrier")
    A(f"v_mov_b32 v{T+2}, 0")
    for i in range(4): A(f"ds_read_b128 v[{T+4+4*i}:{T+7+4*i}], v{T+2} offset:{L_ST+16*i}")
    A("s_waitcnt lgkmcnt(0)")
    M, Ls = T+2, T+3
    mi = [T+4+2*i for i in range(8)]; li = [T+5+2*i for i in range(8)]
    A(f"v_max3_f32 v{M}, v{mi[0]}, v{mi[1]}, v{mi[2]}")
    A(f"v_max3_f32 v{M}, v{M}, v{mi[3]}, v{mi[4]}")
    A(f"v_max3_f32 v{M}, v{M}, v{mi[5]}, v{mi[6]}")
    A(f"v_max_f32 v{M}, v{M}, v{mi[7]}")
    for r in mi + [m]:
        A(f"v_sub_f32 v{r}, v{r}, v{M}")
        A(f"v_mul_f32 v{r}, s55, v{r}")
    for r in mi + [m]: A(f"v_exp_f32 v{r}, v{r}")
    A(f"v_mul_f32 v{Ls}, v{mi[0]}, v{li[0]}")
    for i in range(1, 8): A(f"v_fmac_f32 v{Ls}, v{mi[i]}, v{li[i]}")
    A(f"v_rcp_f32 v{Ls}, v{Ls}")
    A(f"v_mul_f32 v{m}, v{m}, v{Ls}")
    for a in range(8): A(f"v_mul_f32 v{VS+a}, v{VS+a}, v{m}")
    for a in range(8): A(f"v_cvt_pk_bf16_f32 v{VS+a}, v{VS+a}, 0")
    for a in range(8): A(f"v_lshlrev_b32 v{VH+a}, 16, v{VS+a}")
    for e in range(8): A(f"v_mov_b32 v{ACC+e}, 0")
    g.stamp(5)
    DV = g.DV
    ugroup(128, DV, vcons, {8: [xv]} if xv else {}); vshift()
    gs = 16 - g.GS
    ge = 15 if g.flate else 16
    lgroups("L_vloop", 9, min(gs, ge), DV, "s[8:11]", vcons, vshift, xv)
    dl = DV
    if g.GS:
        dl = g.DS
        while st["m"] < 16*gs + g.DS: issue_next()
        if gs < ge: lgroups("L_vloop2", gs, ge, g.DS, "s[8:11]", vcons, vshift)
    if g.flate:
        ugroup(240, dl, vcons, {max(0, 16 - dl - g.flate): [fdma]*(8 - g.fpost)})
    g.q = []
    g.stamp(6)
    red128_a(g)
    A("s_cmp_lg_u32 s3, 0")
    A("s_cbranch_scc1 L_o_done")
    red128_b(g, E)
    for t in range(1, 4): A(f"v_mov_b32_dpp v{E+t}, v{E} quad_perm:[{t},{t},{t},{t}] row_mask:0xf bank_mask:0xf")
    for t in range(4): A(f"v_min_u32 v{E+t}, -2, v{E+t}")
    A(f"buffer_store_dwordx4 v[{E}:{E+3}], v{V_OS}, s[24:27], 0 offen sc1")
    g.lab("L_o_done")
    g.stamp(7)
    A("s_cmp_eq_u32 s44, 0")
    A("s_cbranch_scc1 L_fin")
    if g.flate:
        for _ in range(g.fpost): fdma()
        A("s_waitcnt vmcnt(0)")
        g.stamp(11)
        trreads()
    A("s_mov_b32 s41, 0")
    A(f"v_mov_b32 v{T+20}, 0")
    g.lab("L_rdy")
    A(f"v_readfirstlane_b32 s42, v{V_CNT}")
    A("s_cmp_ge_u32 s42, 256")
    A("s_cbranch_scc1 L_rdy_ok")
    A("s_add_u32 s41, s41, 1")
    A("s_cmp_gt_u32 s41, 400000")
    A("s_cbranch_scc1 L_rdy_ok")
    A(f"global_load_dword v{V_CNT}, v{T+20}, s[84:85] sc1")
    A("s_waitcnt vmcnt(0)")
    A("s_branch L_rdy")
    g.lab("L_rdy_ok")
    VG, VB = T+20, T+21
    A(f"v_bfe_u32 v{VG}, v0, 4, 2"); A(f"v_and_b32 v{VB}, 7, v0")
    A("s_lshl_b32 s42, s3, 10")
    A(f"v_add_u32 v{T+19}, s42, v{V_L16}")
    A("s_mov_b32 s62, 0x00ff00ff"); A("s_mov_b32 s63, 0x00ff00ff")
    A("s_cmp_eq_u32 s44, 2")
    A("s_cbranch_scc1 L_ffn")
    A("s_cmp_eq_u32 s44, 3")
    A("s_cbranch_scc1 L_down")

    def poll(name, loads, ex="-1"):
        A("s_mov_b32 s41, 0")
        if ex != "-1": A(f"s_mov_b64 exec, {ex}")
        for (ins, r, n) in loads: A(ins)
        g.lab(f"L_{name}_chk")
        A("s_waitcnt vmcnt(0)")
        for i, (ins, r, n) in enumerate(loads):
            ms = f"s[{64+2*i}:{65+2*i}]"
            if n == 4:
                A(f"v_max3_u32 v{T+29}, v{r}, v{r+1}, v{r+2}")
                A(f"v_max_u32 v{T+29}, v{T+29}, v{r+3}")
                A(f"v_cmp_eq_u32 {ms}, -1, v{T+29}")
            elif n == 2:
                A(f"v_max_u32 v{T+29}, v{r}, v{r+1}")
                A(f"v_cmp_eq_u32 {ms}, -1, v{T+29}")
            else:
                A(f"v_cmp_eq_u32 {ms}, -1, v{r}")
        A("s_mov_b64 s[42:43], s[64:65]")
        for i in range(1, len(loads)): A(f"s_or_b64 s[42:43], s[42:43], s[{64+2*i}:{65+2*i}]")
        A("s_cmp_eq_u64 s[42:43], 0")
        A(f"s_cbranch_scc1 L_{name}_ok")
        A("s_add_u32 s41, s41, 1")
        A("s_cmp_gt_u32 s41, 400000")
        A(f"s_cbranch_scc1 L_{name}_ok")
        if g.sleep: A(f"s_sleep {g.sleep}")
        for i, (ins, r, n) in enumerate(loads):
            A(f"s_mov_b64 exec, s[{64+2*i}:{65+2*i}]")
            A(f"s_cbranch_execz L_{name}_s{i}")
            A(ins)
            g.lab(f"L_{name}_s{i}")
        A(f"s_mov_b64 exec, {ex}")
        A(f"s_branch L_{name}_chk")
        g.lab(f"L_{name}_ok")
        if ex != "-1": A("s_mov_b64 exec, -1")

    def mfmas(n, bf):
        A("s_waitcnt lgkmcnt(0)")
        for i in range(n):
            c = "0" if i == 0 else f"v[{ACC}:{ACC+3}]"
            A(f"v_mfma_f32_16x16x32_bf16 v[{ACC}:{ACC+3}], v[{WF+4*i}:{WF+4*i+3}], v[{bf+4*i}:{bf+4*i+3}], {c}")
    def red3_write():
        A(f"ds_write_b128 v{T+19}, v[{ACC}:{ACC+3}] offset:{L_RED3}")
        A("s_waitcnt lgkmcnt(0)")
        A("s_barrier")
        A("s_cmp_lg_u32 s3, 0")
        A("s_cbranch_scc1 L_fin")
    def gather4(r):
        A(f"v_mov_b32_dpp v{r+1}, v{r} row_ror:8 row_mask:0xf bank_mask:0xf")
        A(f"v_mov_b32 v{r+2}, v{r}"); A(f"v_mov_b32 v{r+4}, v{r}")
        A(f"v_mov_b32 v{r+3}, v{r+1}"); A(f"v_mov_b32 v{r+5}, v{r+1}")
        A(f"v_permlane16_swap_b32 v{r+4}, v{r+2}")
        A(f"v_permlane16_swap_b32 v{r+5}, v{r+3}")

    A(f"v_lshlrev_b32 v{T}, 13, v{VB}"); A(f"v_lshl_add_u32 v{T}, v{VG}, 4, v{T}")
    A("s_lshl_b32 s40, s57, 1")
    poll("wo", [(f"buffer_load_dwordx4 v[{E+4*i}:{E+4*i+3}], v{T}, s[24:27], s40 offen offset:{64*i} sc1", E+4*i, 4) for i in range(8)], "s[62:63]")
    g.stamp(8)
    mfmas(8, E)
    red3_write()
    for i in range(8): A(f"ds_read_b128 v[{E+4*i}:{E+4*i+3}], v{V_L16} offset:{L_RED3+1024*i}")
    for i in range(1, 8):
        A(f"s_waitcnt lgkmcnt({7-i})")
        A(f"v_pk_add_f32 v[{E}:{E+1}], v[{E}:{E+1}], v[{E+4*i}:{E+4*i+1}]")
        A(f"v_pk_add_f32 v[{E+2}:{E+3}], v[{E+2}:{E+3}], v[{E+4*i+2}:{E+4*i+3}]")
    for t in range(4): A(f"v_min_u32 v{E+t}, -2, v{E+t}")
    A(f"buffer_store_dwordx4 v[{E}:{E+3}], v{V_RS}, s[24:27], 0 offen sc1")
    g.stamp(9)
    A("s_branch L_fin")

    g.lab("L_ffn")
    A("s_mul_i32 s42, s3, 1280")
    g.srd(28, 64, 65, "s42", 1280)
    XR = E + 24
    A(f"v_lshlrev_b32 v{T+18}, 2, v{V_LANE}")
    A(f"buffer_load_dwordx2 v[{XR}:{XR+1}], v{V_L8}, s[28:31], 0 offen")
    A(f"buffer_load_dwordx2 v[{XR+2}:{XR+3}], v{V_L8}, s[28:31], 0 offen offset:512")
    A(f"buffer_load_dword v{XR+4}, v{T+18}, s[28:31], 0 offen offset:1024")
    A("s_mul_i32 s40, s3, 2560"); A(f"s_add_u32 s40, s40, {AP}"); A("s_add_u32 s47, s40, 20480")
    A(f"s_mul_i32 s42, s3, {XPITCH}")
    A(f"v_add_u32 v{E+30}, s42, v{V_L8}")
    A(f"v_add_u32 v{E+31}, s42, v{T+18}")
    A(f"s_movk_i32 s42, {XPITCH}")
    A(f"v_mul_lo_u32 v{T+17}, v{VB}, s42")
    A(f"v_lshl_add_u32 v{T+17}, v{VG}, 4, v{T+17}")
    A("s_lshr_b32 s42, s3, 1"); A("s_mul_i32 s42, s42, 320")
    A(f"v_add_u32 v{T+17}, s42, v{T+17}")
    A(f"v_and_b32 v{T+16}, 0x37, v{V_LANE}"); A(f"v_lshlrev_b32 v{T+16}, 4, v{T+16}")
    A(f"v_bfe_u32 v{T+15}, v0, 3, 1"); A(f"v_lshl_add_u32 v{T+16}, v{T+15}, 3, v{T+16}")
    P0, P1 = E, E + 12
    lds = []
    for (p, so) in ((P0, "s40"), (P1, "s47")):
        lds += [(f"buffer_load_dwordx4 v[{p}:{p+3}], v{V_L16}, s[24:27], {so} offen sc1", p, 4),
                (f"buffer_load_dwordx4 v[{p+4}:{p+7}], v{V_L16}, s[24:27], {so} offen offset:1024 sc1", p+4, 4),
                (f"buffer_load_dwordx2 v[{p+8}:{p+9}], v{V_L8}, s[24:27], {so} offen offset:2048 sc1", p+8, 2)]
    poll("hb", lds)
    g.stamp(8)
    def make_h(n2, p0, p1, x, dst):
        for k in range(n2): A(f"v_pk_add_f32 v[{p0+2*k}:{p0+2*k+1}], v[{p0+2*k}:{p0+2*k+1}], v[{p1+2*k}:{p1+2*k+1}]")
        for k in range(n2): A(f"v_cvt_pk_bf16_f32 v{p1+k}, v{p0+2*k}, v{p0+2*k+1}")
        for k in range(n2): unpack(g, p0+2*k, p1+k)
        for k in range(n2): unpack(g, dst+2*k, x+k)
        for k in range(n2): A(f"v_pk_add_f32 v[{p0+2*k}:{p0+2*k+1}], v[{p0+2*k}:{p0+2*k+1}], v[{dst+2*k}:{dst+2*k+1}]")
        for k in range(n2): A(f"v_cvt_pk_bf16_f32 v{p1+k}, v{p0+2*k}, v{p0+2*k+1}")
        for k in range(n2): unpack(g, dst+2*k, p1+k)
    make_h(5, P0, P1, XR, T)
    ln_stats(g, T+13, T+14)
    for k in range(10): A(f"v_sub_f32 v{T+k}, v{T+k}, v{T+13}")
    for k in range(5): A(f"v_cvt_pk_bf16_f32 v{E+k}, v{T+2*k}, v{T+2*k+1}")
    for k in range(5): unpack(g, T+2*k, E+k)
    for k in range(10): A(f"v_mul_f32 v{T+k}, v{T+k}, v{T+14}")
    for k in range(5): A(f"v_cvt_pk_bf16_f32 v{E+k}, v{T+2*k}, v{T+2*k+1}")
    A(f"ds_write_b64 v{E+30}, v[{E}:{E+1}] offset:{L_XN}")
    A(f"ds_write_b64 v{E+30}, v[{E+2}:{E+3}] offset:{L_XN+512}")
    A(f"ds_write_b32 v{E+31}, v{E+4} offset:{L_XN+1024}")
    A("s_waitcnt lgkmcnt(0)")
    A("s_barrier")
    for i in range(5): A(f"ds_read_b128 v[{E+4*i}:{E+4*i+3}], v{T+17} offset:{L_XN+64*i}")
    for i in range(5):
        A(f"s_waitcnt lgkmcnt({4-i})")
        c = "0" if i == 0 else f"v[{ACC}:{ACC+3}]"
        A(f"v_mfma_f32_16x16x32_bf16 v[{ACC}:{ACC+3}], v[{WF+4*i}:{WF+4*i+3}], v[{E+4*i}:{E+4*i+3}], {c}")
    red3_write()
    for i in range(8): A(f"ds_read_b64 v[{T+2*i}:{T+2*i+1}], v{T+16} offset:{L_RED3+1024*i}")
    c1 = -2*math.sqrt(2/math.pi)*math.log2(math.e); c2 = c1*0.044715
    A(f"s_mov_b32 s42, {f2u(c2):#x}"); A(f"v_mov_b32 v{E+8}, {f2u(c1):#x}")
    for i in (2, 4, 6):
        A(f"s_waitcnt lgkmcnt({6-i})")
        A(f"v_pk_add_f32 v[{T}:{T+1}], v[{T}:{T+1}], v[{T+2*i}:{T+2*i+1}]")
        A(f"v_pk_add_f32 v[{T+2}:{T+3}], v[{T+2}:{T+3}], v[{T+2*i+2}:{T+2*i+3}]")
    A(f"v_cvt_pk_bf16_f32 v{T+4}, v{T}, v{T+1}"); A(f"v_cvt_pk_bf16_f32 v{T+5}, v{T+2}, v{T+3}")
    unpack(g, T, T+4); unpack(g, T+2, T+5)
    for t in range(2): A(f"v_mul_f32 v{T+6+t}, v{T+t}, v{T+t}")
    for t in range(2): A(f"v_fma_f32 v{T+6+t}, v{T+6+t}, s42, v{E+8}")
    for t in range(2): A(f"v_mul_f32 v{T+6+t}, v{T+6+t}, v{T+t}")
    for t in range(2): A(f"v_exp_f32 v{T+6+t}, v{T+6+t}")
    for t in range(2): A(f"v_add_f32 v{T+6+t}, 1.0, v{T+6+t}")
    for t in range(2): A(f"v_rcp_f32 v{T+6+t}, v{T+6+t}")
    for t in range(2): A(f"v_mul_f32 v{T+t}, v{T+t}, v{T+6+t}")
    A(f"v_cvt_pk_bf16_f32 v{T+4}, v{T}, v{T+1}")
    unpack(g, T, T+4)
    A(f"v_mul_f32 v{T}, v{T}, v{T+2}"); A(f"v_mul_f32 v{T+1}, v{T+1}, v{T+3}")
    A(f"v_cvt_pk_bf16_f32 v{E}, v{T}, v{T+1}")
    A(f"v_min_u32 v{E}, -2, v{E}")
    gather4(E)
    A(f"buffer_store_dwordx4 v[{E}:{E+3}], v{V_RS}, s[24:27], 0 offen sc1")
    g.stamp(9)
    A("s_branch L_fin")

    g.lab("L_down")
    A(f"s_mul_i32 s42, s3, 3584"); A(f"s_add_u32 s42, s42, {ACT}")
    A(f"s_sub_u32 s43, {ACT+54*512}, s42")
    g.srd(16, 86, 87, "s42", "s43")
    A(f"v_lshlrev_b32 v{T}, 7, v{VG}"); A(f"v_lshl_add_u32 v{T}, v{VB}, 4, v{T}")
    A(f"v_and_b32 v{T+3}, 0x37, v{V_LANE}"); A(f"v_lshlrev_b32 v{T+3}, 4, v{T+3}")
    A(f"v_bfe_u32 v{T+4}, v0, 3, 1"); A(f"v_lshl_add_u32 v{T+3}, v{T+4}, 3, v{T+3}")
    A("s_cmp_lg_u32 s3, 0")
    A("s_cbranch_scc1 L_dn1")
    A(f"v_lshlrev_b32 v{T+5}, 1, v{VG}"); A(f"v_add_u32 v{T+5}, v{T+5}, v{T+4}")
    A("s_movk_i32 s42, 1280")
    A(f"v_mul_lo_u32 v{T+6}, v{VB}, s42")
    A(f"v_lshl_add_u32 v{T+6}, v{T+5}, 2, v{T+6}")
    A("s_lshl_b32 s40, s45, 5")
    g.srd(28, 64, 65, 0, 10240)
    A(f"buffer_load_dword v{T+12}, v{T+6}, s[28:31], s40 offen")
    A(f"v_lshlrev_b32 v{T+7}, 1, v{T+6}")
    A("s_lshl_b32 s47, s45, 6"); A(f"s_add_u32 s47, s47, {AP}"); A("s_add_u32 s46, s47, 20480")
    A(f"v_mul_lo_u32 v{T+14}, v{VB}, s42"); A(f"v_lshrrev_b32 v{T+15}, 1, v{VG}"); A(f"v_lshl_add_u32 v{T+14}, v{T+15}, 4, v{T+14}")
    A("v_and_b32 v20, 0x18, v0"); A("v_cmp_eq_u32 vcc, 0, v20"); A(f"v_mov_b32 v20, {OOB}")
    A(f"v_cndmask_b32 v{T+14}, v20, v{T+14}, vcc")
    poll("hd", [(f"buffer_load_dwordx2 v[{T+8}:{T+9}], v{T+7}, s[24:27], s47 offen sc1", T+8, 2),
                (f"buffer_load_dwordx2 v[{T+10}:{T+11}], v{T+7}, s[24:27], s46 offen sc1", T+10, 2)])
    make_h(1, T+8, T+10, T+12, T+16)
    g.lab("L_dn1")
    poll("ac", [(f"buffer_load_dwordx4 v[{E+4*i}:{E+4*i+3}], v{T}, s[16:19], 0 offen offset:{512*i} sc1", E+4*i, 4) for i in range(7)], "s[62:63]")
    g.stamp(8)
    mfmas(7, E)
    red3_write()
    for i in range(8): A(f"ds_read_b64 v[{VP+2*i}:{VP+2*i+1}], v{T+3} offset:{L_RED3+1024*i}")
    for i in range(1, 8):
        A(f"s_waitcnt lgkmcnt({7-i})")
        A(f"v_pk_add_f32 v[{VP}:{VP+1}], v[{VP}:{VP+1}], v[{VP+2*i}:{VP+2*i+1}]")
    A(f"v_cvt_pk_bf16_f32 v{VP}, v{VP}, v{VP+1}")
    unpack(g, VP+2, VP)
    A(f"v_pk_add_f32 v[{VP+2}:{VP+3}], v[{VP+2}:{VP+3}], v[{T+16}:{T+17}]")
    A(f"v_cvt_pk_bf16_f32 v{E}, v{VP+2}, v{VP+3}")
    gather4(E)
    A(f"buffer_store_dwordx4 v[{E}:{E+3}], v{T+14}, s[32:35], s40 offen")
    g.stamp(9)
    g.lab("L_fin")
    if g.ts:
        A("s_getreg_b32 s42, hwreg(HW_REG_XCC_ID)")
        A(f"v_writelane_b32 v{V_TS}, s42, 14")
        A(f"v_writelane_b32 v{V_TS}, s44, 15")
        A("s_waitcnt vmcnt(0)")
        g.stamp(10)
        A("s_lshl_b32 s42, s2, 3"); A("s_add_u32 s42, s42, s3"); A("s_lshl_b32 s42, s42, 6"); A(f"s_add_u32 s42, s42, {TSOFF}")
        A(f"v_lshl_add_u32 v{T}, v{V_LANE}, 2, s42")
        A("s_mov_b64 exec, 0xffff")
        A(f"global_store_dword v{T}, v{V_TS}, s[86:87]")
    g.lab("L_end")
    A("s_endpgm")
    body, added = hazard.fix(L)
    body += ['.section .rodata,"a"', ".p2align 6", f".amdhsa_kernel {KN}",
             "  .amdhsa_next_free_vgpr 256", "  .amdhsa_next_free_sgpr 100", "  .amdhsa_accum_offset 256",
             "  .amdhsa_group_segment_fixed_size 0", "  .amdhsa_kernarg_size 96", "  .amdhsa_user_sgpr_count 2",
             "  .amdhsa_user_sgpr_kernarg_segment_ptr 1", "  .amdhsa_system_sgpr_workgroup_id_x 1", ".end_amdhsa_kernel"]
    return "\n".join(body) + "\n"

if __name__ == "__main__":
    out = sys.argv[1]
    kw = eval("dict(" + (sys.argv[2] if len(sys.argv) > 2 else "") + ")")
    open(out, "w").write(gen(**kw))
```

```python
import sys
import hazard
KN = "sequential_preLN__mha_block_cached__geglu_ffn__decode_kernel"

HEADER = """; Fused pre-LN attention (KV-cache decode) + GEGLU FFN, one launch, 256 workgroups x 512 threads.
"""

PART = 0
HBUF = 0xA0000
ACT  = 0xB0000
WSSZ = 0xC0000
TSOFF = 0x200000
DUMP = 0x300000
L_RED = 0
L_QB = 4096
L_ST = 6144
L_RED2 = 8192
L_XN = 28672
XPITCH = 1344
L_RED3 = 40960
LDS_BYTES = 49152

V_TID, V_LANE, V_KV = 0, 1, 2
V_Q = 3
V_C16 = 7
RING = 8
VP = 40
VS = 56
VH = 64
ACC = 72
RA = 80
RB = 160
RC = 192
T = 224
V_TS = 255

LOG2E = 0x3fb8aa3b
SCALE = 0x3db504f3

class G:
    def __init__(s, **kw):
        s.L = []; s.q = []; s.uid = 0
        s.D = kw.get("D", 3); s.NB = kw.get("NB", 4); s.NPRE = kw.get("NPRE", 12); s.XV = kw.get("XV", 4)
        s.ts = kw.get("ts", 0); s.dump = kw.get("dump", 0); s.pol = kw.get("pol", "nt")
        s.sleep = kw.get("sleep", 1)
        s.wpol = kw.get("wpol", "")
        s.qpol = kw.get("qpol", ""); s.fpol = kw.get("fpol", "")
        s.nof = kw.get("nof", 0); s.nowo = kw.get("nowo", 0)
        s.nts = 0
    def A(s, t): s.L.append("  " + t)
    def lab(s, t): s.L.append(t + ":")
    def vm(s, t, tag=None):
        s.A(t); s.uid += 1
        tag = tag or f"_{s.uid}"
        s.q.append(tag); return tag
    def wait(s, tag):
        if tag not in s.q: return
        i = s.q.index(tag); n = len(s.q) - 1 - i
        assert n <= 63, n
        s.A(f"s_waitcnt vmcnt({n})"); s.q = s.q[i+1:]
    def waitall(s):
        s.A("s_waitcnt vmcnt(0)"); s.q = []
    def stamp(s, k):
        if not s.ts: return
        s.A("s_memrealtime s[88:89]"); s.A("s_waitcnt lgkmcnt(0)"); s.A(f"v_writelane_b32 v{V_TS}, s88, {k}")
    def srd(s, d, lo, hi, off, nrec):
        s.A(f"s_add_u32 s{d}, s{lo}, {off}"); s.A(f"s_addc_u32 s{d+1}, s{hi}, 0")
        s.A(f"s_mov_b32 s{d+2}, {nrec}"); s.A(f"s_mov_b32 s{d+3}, 0x00020000")

def v(i, n=1): return f"v{i}" if n == 1 else f"v[{i}:{i+n-1}]"

def bf16r(g, dst, src):
    g.A(f"v_cvt_pk_bf16_f32 v{dst}, v{src}, v{src}")
    g.A(f"v_and_b32 v{dst}, 0xffff0000, v{dst}")

def wave_allreduce(g, rs, op):
    for sh in (8, 4, 2, 1):
        for r in rs: g.A(f"{op}_dpp v{r}, v{r}, v{r} row_ror:{sh} row_mask:0xf bank_mask:0xf")
    for sw in ("16", "32"):
        for k, r in enumerate(rs):
            t = T + 28 + k
            g.A(f"v_mov_b32 v{t}, v{r}")
        for k, r in enumerate(rs):
            t = T + 28 + k
            g.A(f"v_permlane{sw}_swap_b32 v{r}, v{t}")
        for k, r in enumerate(rs):
            t = T + 28 + k
            g.A(f"{op} v{r}, v{r}, v{t}")

def ln_stats(g, d4, d1, vm, vr):
    src = [d4, d4+1, d4+2, d4+3, d1]
    for k, r in enumerate(src):
        g.A(f"v_lshlrev_b32 v{T+2*k}, 16, v{r}")
        g.A(f"v_and_b32 v{T+2*k+1}, 0xffff0000, v{r}")
    g.A(f"v_readfirstlane_b32 s42, v{T}")
    s1, s2, d = T+10, T+11, T+12
    g.A(f"v_subrev_f32 v{s1}, s42, v{T}")
    g.A(f"v_mul_f32 v{s2}, v{s1}, v{s1}")
    for k in range(1, 10):
        g.A(f"v_subrev_f32 v{d}, s42, v{T+k}")
        g.A(f"v_add_f32 v{s1}, v{s1}, v{d}")
        g.A(f"v_fmac_f32 v{s2}, v{d}, v{d}")
    wave_allreduce(g, [s1, s2], "v_add_f32")
    g.A("s_mov_b32 s43, 0x3acccccd")
    g.A(f"v_mul_f32 v{s1}, s43, v{s1}")
    g.A(f"v_mul_f32 v{s2}, s43, v{s2}")
    g.A(f"v_fma_f32 v{s2}, -v{s1}, v{s1}, v{s2}")
    g.A(f"v_max_f32 v{s2}, 0, v{s2}")
    g.A(f"v_add_f32 v{s1}, s42, v{s1}")
    bf16r(g, vm, s1)
    bf16r(g, s2, s2)
    g.A(f"v_add_f32 v{s2}, 0x3727c5ac, v{s2}")
    bf16r(g, s2, s2)
    g.A(f"v_sqrt_f32 v{s2}, v{s2}")
    bf16r(g, s2, s2)
    g.A(f"v_rcp_f32 v{vr}, v{s2}")

def reduce128(g, wait_tag=None):
    a = ACC
    for t in range(4): g.A(f"v_permlane32_swap_b32 v{a+t}, v{a+t+4}")
    for t in range(4): g.A(f"v_add_f32 v{a+t}, v{a+t}, v{a+t+4}")
    g.A(f"v_permlane16_swap_b32 v{a}, v{a+2}")
    g.A(f"v_permlane16_swap_b32 v{a+1}, v{a+3}")
    g.A(f"v_add_f32 v{a}, v{a}, v{a+2}")
    g.A(f"v_add_f32 v{a+1}, v{a+1}, v{a+3}")
    g.A(f"ds_write_b64 v{V_RW}, v[{a}:{a+1}] offset:{L_RED}")
    g.A("s_waitcnt lgkmcnt(0)")
    g.A("s_barrier")
    for i in range(8):
        g.A(f"ds_read_b64 v[{T+2*i}:{T+2*i+1}], v{V_L8} offset:{L_RED + 512*i}")
    for i in range(1, 8):
        g.A(f"s_waitcnt lgkmcnt({7-i})")
        g.A(f"v_pk_add_f32 v[{T}:{T+1}], v[{T}:{T+1}], v[{T+2*i}:{T+2*i+1}]")
    g.A(f"v_cvt_pk_bf16_f32 v{T+16}, v{T}, v{T+1}")

V_RW = T + 24
V_L8 = T + 25
V_PO = T + 26
V_X = T + 27

def gen(**kw):
    g = G(**kw); A = g.A; D = g.D; NB = g.NB
    L = g.L
    for ln in HEADER.splitlines(): L.append(ln)
    L.append(f"; @launch grid=(256,1,1) block=(512,1,1) lds={LDS_BYTES}")
    L.append('.amdgcn_target "amdgcn-amd-amdhsa--gfx950"')
    L.append(".text"); L.append(f".globl {KN}"); L.append(".p2align 8"); L.append(f".type {KN},@function"); L.append(f"{KN}:")
    A("s_cmp_ge_u32 s2, 256")
    A("s_cbranch_scc1 L_end")
    A("s_load_dwordx16 s[64:79], s[0:1], 0")
    A("s_load_dwordx8 s[80:87], s[0:1], 64")
    if g.ts: A(f"v_mov_b32 v{V_TS}, 0")
    A("v_lshrrev_b32 v8, 6, v0")
    A(f"v_and_b32 v{V_LANE}, 63, v0")
    A("v_readfirstlane_b32 s3, v8")
    A(f"v_and_b32 v{V_C16}, 15, v0")
    A("s_lshr_b32 s38, s2, 5")
    A("s_and_b32 s39, s2, 31")
    A(f"v_lshlrev_b32 v{V_KV}, 4, v{V_LANE}")
    A("s_lshl_b32 s42, s3, 12")
    A(f"v_add_u32 v{V_KV}, s42, v{V_KV}")
    A(f"v_bfe_u32 v9, v0, 4, 2")
    A("s_mul_i32 s42, s3, 80")
    A("v_add_u32 v10, s42, v9")
    A(f"v_lshlrev_b32 v11, 4, v{V_C16}")
    A("v_lshl_add_u32 v12, v10, 13, v11")
    A(f"v_lshl_add_u32 v13, v{V_C16}, 2, v10")
    A("v_lshlrev_b32 v13, 1, v13")
    A(f"v_lshlrev_b32 v14, 4, v{V_LANE}")
    A(f"v_lshlrev_b32 v15, 2, v{V_LANE}")
    A(f"v_lshlrev_b32 v{V_L8}, 3, v{V_LANE}")
    A("s_lshl_b32 s42, s3, 9")
    A(f"v_lshlrev_b32 v16, 5, v{V_C16}")
    A("v_lshl_add_u32 v16, v9, 3, v16")
    A(f"v_add_u32 v{V_RW}, s42, v16")
    A("s_mul_i32 s42, s38, 20")
    A("v_lshrrev_b32 v16, 3, v0")
    A("v_add_u32 v16, s42, v16")
    A("v_lshlrev_b32 v16, 12, v16")
    A("v_and_b32 v17, 7, v0")
    A("v_lshl_add_u32 v16, v17, 4, v16")
    A("s_lshl_b32 s42, s39, 7")
    A("v_add_u32 v16, s42, v16")
    A("v_mov_b32 v17, 0x7ffffff0")
    A("v_cmp_gt_u32 vcc, 160, v0")
    A(f"v_cndmask_b32 v{V_PO}, v17, v16, vcc")
    A("s_mov_b32 s44, 0"); A("s_mov_b32 s45, 0")
    A("s_mov_b32 s56, 0x7ffffff0")
    A("s_cmp_lt_u32 s39, 5")
    A("s_cbranch_scc0 L_r1")
    A("s_mov_b32 s44, 1")
    A("s_mul_i32 s56, s38, 1280"); A("s_lshl_b32 s42, s39, 8"); A("s_add_u32 s56, s56, s42"); A(f"s_add_u32 s56, s56, {HBUF}")
    A("s_branch L_r3")
    g.lab("L_r1")
    A("s_cmp_lt_u32 s39, 19")
    A("s_cbranch_scc0 L_r2")
    A("s_sub_u32 s45, s39, 5"); A("s_lshl_b32 s45, s45, 3"); A("s_add_u32 s45, s45, s38")
    A("s_cmp_lt_u32 s45, 108")
    A("s_cbranch_scc0 L_r3")
    A("s_mov_b32 s44, 2")
    A("s_lshl_b32 s56, s45, 8"); A(f"s_add_u32 s56, s56, {ACT}")
    A("s_branch L_r3")
    g.lab("L_r2")
    A("s_cmp_lt_u32 s39, 24")
    A("s_cbranch_scc0 L_r3")
    A("s_mov_b32 s44, 3")
    A("s_sub_u32 s45, s39, 19"); A("s_lshl_b32 s45, s45, 3"); A("s_add_u32 s45, s45, s38")
    g.lab("L_r3")
    A("v_subrev_u32 v16, 192, v0")
    A("v_lshlrev_b32 v18, 4, v16")
    A("v_add_u32 v18, s56, v18")
    A("v_cmp_gt_u32 vcc, 16, v16")
    A("v_cndmask_b32 v18, v17, v18, vcc")
    for k in range(4): A(f"v_mov_b32 v{20+k}, -1")
    A("s_waitcnt lgkmcnt(0)")
    g.stamp(0)
    A("s_mul_i32 s42, s38, 1280")
    g.srd(28, 64, 65, "s42", 1280)
    A("s_lshl_b32 s42, s39, 8")
    A(f"s_sub_u32 s43, {640*8192}, s42")
    g.srd(16, 70, 71, "s42", "s43")
    A("s_lshl_b32 s42, s2, 20")
    g.srd(4, 66, 67, "s42", 1 << 20)
    X4, X1, XM0, XM1 = T+16, T+20, T+21, T+22
    g.vm(f"buffer_load_dwordx4 v[{X4}:{X4+3}], v14, s[28:31], 0 offen")
    g.vm(f"buffer_load_dword v{X1}, v15, s[28:31], 0 offen offset:1024")
    g.vm(f"buffer_load_ushort v{XM0}, v13, s[28:31], 0 offen")
    g.vm(f"buffer_load_ushort v{XM1}, v13, s[28:31], 0 offen offset:128", "x")
    def kv_load(buf, srd, n, tag, soff=None):
        win = n >> 2; imm = (n & 3) * 1024
        if soff is None:
            if win == 0: so = "0"
            else:
                A(f"s_mov_b32 s42, {win*32768}"); so = "s42"
        else: so = soff
        g.vm(f"buffer_load_dwordx4 v[{buf}:{buf+3}], v{V_KV}, {srd}, {so} offen offset:{imm} {g.pol}", tag)
    def kbuf(n): return RB + 4*n if n < 16 else RING + 4*(n % NB)
    kn = 0
    early = min(8, g.NPRE)
    for j in range(20):
        if j == 0: so = "0"
        else:
            A(f"s_mov_b32 s42, {j*32768}"); so = "s42"
        g.vm(f"buffer_load_dwordx4 v[{RA+4*j}:{RA+4*j+3}], v12, s[16:19], {so} offen {g.qpol}", f"wq{j}")
        if j % 5 == 4:
            for _ in range(early // 4):
                kv_load(kbuf(kn), "s[4:7]", kn, f"k{kn}"); kn += 1
    while kn < g.NPRE:
        kv_load(kbuf(kn), "s[4:7]", kn, f"k{kn}"); kn += 1
    A("s_lshl_b32 s42, s2, 20")
    g.srd(8, 68, 69, "s42", 1 << 20)
    g.srd(24, 86, 87, 0, WSSZ)
    g.vm(f"buffer_store_dwordx4 v[20:23], v{V_PO}, s[24:27], 0 offen sc1")
    g.vm(f"buffer_store_dwordx4 v[20:23], v18, s[24:27], 0 offen sc1", "clr")
    g.srd(32, 82, 83, 0, 10240)
    g.wait("x")
    VM, VR = T+13, T+14
    ln_stats(g, X4, X1, VM, VR)
    MLO0, MHI0, MLO1, MHI1 = T+16, T+17, T+18, T+19
    for src, lo, hi in ((XM0, MLO0, MHI0), (XM1, MLO1, MHI1)):
        A(f"v_lshlrev_b32 v{src}, 16, v{src}")
        A(f"v_sub_f32 v{src}, v{src}, v{VM}")
        bf16r(g, src, src)
        A(f"v_mul_f32 v{src}, v{src}, v{VR}")
        A(f"v_cvt_pk_bf16_f32 v{lo}, v{src}, 0")
        A(f"v_lshlrev_b32 v{hi}, 16, v{lo}")
    for e in range(8): A(f"v_mov_b32 v{ACC+e}, 0")
    def pv(buf, lo, hi, j):
        for t in range(4):
            A(f"v_dot2c_f32_bf16_dpp v{ACC+2*t}, v{lo}, v{buf+t} row_newbcast:{j} row_mask:0xf bank_mask:0xf")
            A(f"v_dot2c_f32_bf16_dpp v{ACC+2*t+1}, v{hi}, v{buf+t} row_newbcast:{j} row_mask:0xf bank_mask:0xf")
    for j in range(20):
        g.wait(f"wq{j}")
        if j < 16: pv(RA+4*j, MLO0, MHI0, j)
        else: pv(RA+4*j, MLO1, MHI1, j-16)
    g.stamp(1)
    g.wait("clr")
    reduce128(g)
    A("s_lshl_b32 s42, s3, 8")
    A(f"v_lshl_add_u32 v{T+17}, v{V_LANE}, 2, s42")
    A(f"v_lshl_add_u32 v{T+18}, v{V_C16}, 4, s42")
    A(f"ds_write_b32 v{T+17}, v{T+16} offset:{L_QB}")
    A("s_waitcnt lgkmcnt(0)")
    A(f"ds_read_b128 v[{T}:{T+3}], v{T+18} offset:{L_QB}")
    A("s_cmp_lg_u32 s3, 0")
    A("s_cbranch_scc1 L_nocnt")
    A(f"v_mov_b32 v{T+4}, 0"); A(f"v_mov_b32 v{T+5}, 1")
    A("s_mov_b64 exec, 1")
    A(f"global_atomic_add v{T+4}, v{T+5}, s[84:85] sc1")
    A("s_mov_b64 exec, -1")
    g.lab("L_nocnt")
    A("s_waitcnt lgkmcnt(0)")
    for t in range(4): A(f"v_mov_b32 v{V_Q+t}, v{T+t}")
    if g.dump:
        A(f"s_lshl_b32 s42, s2, 8"); A(f"s_add_u32 s42, s42, {DUMP}")
        A(f"v_add_u32 v{T+6}, s42, v15")
        A("s_cmp_lg_u32 s3, 0"); A("s_cbranch_scc1 L_nd1")
        A(f"global_store_dword v{T+6}, v{T+16}, s[86:87]")
        g.lab("L_nd1")
    g.stamp(2)
    A("s_lshl_b32 s42, s39, 7"); A("s_lshl_b32 s43, s3, 4"); A("s_add_u32 s42, s42, s43"); A("s_mul_i32 s42, s42, 1280")
    g.srd(16, 72, 73, "s42", 16*1280)
    A("s_mov_b32 s46, 0"); A("s_mov_b32 s57, 0"); A("s_mov_b32 s58, s76"); A("s_mov_b32 s59, s77"); A("s_mov_b32 s60, 0")
    A("s_cmp_eq_u32 s44, 2")
    A("s_cbranch_scc0 L_f1")
    A("s_mov_b32 s46, 3456")
    A("s_bitcmp1_b32 s3, 0")
    A("s_cselect_b32 s58, s78, s76"); A("s_cselect_b32 s59, s79, s77")
    A("s_lshr_b32 s42, s3, 1"); A("s_mul_i32 s57, s42, 160")
    A("s_mov_b32 s60, 160")
    A("s_branch L_f2")
    g.lab("L_f1")
    A("s_cmp_eq_u32 s44, 3")
    A("s_cbranch_scc0 L_f2")
    A("s_mov_b32 s46, 1280")
    A("s_mov_b32 s58, s80"); A("s_mov_b32 s59, s81")
    A("s_mul_i32 s57, s3, 224")
    A("s_sub_u32 s60, 1728, s57"); A("s_min_u32 s60, s60, 224")
    g.lab("L_f2")
    A("s_mul_i32 s42, s57, s46"); A("s_lshl_b32 s43, s45, 5"); A("s_add_u32 s42, s42, s43")
    A("s_mul_i32 s60, s60, s46"); A("s_sub_u32 s61, s60, s43"); A("s_cmp_eq_u32 s60, 0"); A("s_cselect_b32 s60, 0, s61")
    g.srd(20, 58, 59, "s42", "s60")
    A("s_lshl_b32 s42, s46, 3")
    A(f"v_bfe_u32 v{T+6}, v0, 4, 2")
    A(f"v_mul_lo_u32 v{T+6}, v{T+6}, s42")
    A(f"v_lshl_add_u32 v{V_X}, v{V_C16}, 1, v{T+6}")
    A("s_mov_b32 s47, 0")
    A("s_mul_i32 s61, s46, 25")
    A("s_mov_b32 s50, 0xcccccccc"); A("s_mov_b32 s51, 0xcccccccc")
    A("s_mov_b32 s52, 0xaaaaaaaa"); A("s_mov_b32 s53, 0xaaaaaaaa")
    A(f"s_mov_b32 s54, {SCALE}")
    A("s_mov_b32 s62, 0x05040100"); A("s_mov_b32 s63, 0x07060302")
    V14, V15 = T+22, T+23
    A(f"v_mov_b32 v{V14}, v14"); A(f"v_mov_b32 v{V15}, v15")

    def kdot(buf, j):
        A(f"v_dot2_f32_bf16 v{VP+j}, v{buf}, v{V_Q}, 0")
        for t in range(1, 4): A(f"v_dot2_f32_bf16 v{VP+j}, v{buf+t}, v{V_Q+t}, v{VP+j}")
    def kfinish():
        P = VP
        for a in range(8): A(f"v_add_f32_dpp v{P+a}, v{P+a}, v{P+a} row_shl:8 row_mask:0xf bank_mask:0x3")
        for a in range(8): A(f"v_add_f32_dpp v{P+a}, v{P+a+8}, v{P+a+8} row_shr:8 row_mask:0xf bank_mask:0xc")
        for a in range(4): A(f"v_add_f32_dpp v{P+a}, v{P+a}, v{P+a} row_shl:4 row_mask:0xf bank_mask:0x5")
        for a in range(4): A(f"v_add_f32_dpp v{P+a}, v{P+a+4}, v{P+a+4} row_shr:4 row_mask:0xf bank_mask:0xa")
        for a in range(4): A(f"v_add_f32_dpp v{P+a}, v{P+a}, v{P+a} quad_perm:[2,3,0,1] row_mask:0xf bank_mask:0xf")
        for a in range(2): A(f"v_cndmask_b32 v{P+a}, v{P+a}, v{P+a+2}, s[50:51]")
        for a in range(2): A(f"v_add_f32_dpp v{P+a}, v{P+a}, v{P+a} quad_perm:[1,0,3,2] row_mask:0xf bank_mask:0xf")
        for a in range(7): A(f"v_mov_b32 v{VS+a}, v{VS+a+1}")
        A(f"v_cndmask_b32 v{P}, v{P}, v{P+1}, s[52:53]")
        bf16r(g, P, P)
        A(f"v_mul_f32 v{P}, s54, v{P}")
        bf16r(g, VS+7, P)

    for _ in range(D):
        kv_load(kbuf(kn), "s[4:7]", kn, f"k{kn}"); kn += 1
    def kstep(n, extras=()):
        nonlocal kn
        j = n & 15
        g.wait(f"k{n}")
        if kn <= n + D and (D < NB or kn < 16):
            issue_next()
        for e in extras: e()
        kdot(kbuf(n), j)
        if kn <= n + D: issue_next()
    vn = 0
    def vbuf(n): return RC + 4*n if n < 8 else RING + 4*(n % NB)
    def issue_next():
        nonlocal kn, vn
        if kn < 128:
            kv_load(kbuf(kn), "s[4:7]", kn, f"k{kn}")
        else:
            kv_load(vbuf(vn), "s[8:11]", vn, f"v{vn}"); vn += 1
        kn += 1
    for n in range(16): kstep(n)
    kfinish()
    g.stamp(3)
    def wo_load(row):
        def f():
            u, odd = row >> 1, row & 1
            base = RA + 10*u + 5*odd
            b4 = RA + 10*u + 4*odd; b1 = RA + 10*u + 8 + odd
            if g.nowo: return
            A(f"s_mov_b32 s43, {row*1280}")
            g.vm(f"buffer_load_dwordx4 v[{b4}:{b4+3}], v{V14}, s[16:19], s43 offen {g.wpol}")
            g.vm(f"buffer_load_dword v{b1}, v{V15}, s[16:19], s43 offen offset:1024 {g.wpol}", f"wo{row}")
        return f
    for n in range(16, 32): kstep(n, [wo_load(n-16)])
    kfinish()
    g.stamp(11)
    def f_load(idx):
        def f():
            if g.nof: return
            g.vm(f"buffer_load_ushort v{RB+idx}, v{V_X}, s[20:23], s47 offen {g.fpol}", f"f{idx}")
            if idx % 8 == 7: A("s_add_u32 s47, s47, s61")
            else: A("s_add_u32 s47, s47, s46")
        return f
    def wo_perm(u):
        def f():
            g.wait(f"wo{2*u+1}")
            b = RA + 10*u
            for a, bb in [(b+t, b+4+t) for t in range(4)] + [(b+8, b+9)]:
                A(f"v_perm_b32 v{T}, v{bb}, v{a}, s62")
                A(f"v_perm_b32 v{bb}, v{bb}, v{a}, s63")
                A(f"v_mov_b32 v{a}, v{T}")
        return f
    for n in range(32, 48):
        i = n - 32
        fp = -(-56 // (16 - D + 1))
        ex = [f_load(fp*i + t) for t in range(fp) if fp*i + t < 56]
        if i % 2 == 1: ex.append(wo_perm(i >> 1))
        kstep(n, ex)
    kfinish()
    g.stamp(12)
    assert g.q[len(g.q)-(D-1):] == [f"k{49+i}" for i in range(D-1)], g.q
    A(f"s_mov_b32 s40, {3*131072}")
    A("s_mov_b32 s41, 3")
    g.lab("L_kloop")
    def loop_body(srd, consume):
        cur = None
        def issue(jn):
            nonlocal cur
            win = jn >> 2
            if win != cur:
                if win == 0: pass
                else: A(f"s_add_u32 s42, s40, {win*32768}")
                cur = win
            so = "s40" if win == 0 else "s42"
            b = RING + 4*(jn % NB)
            A(f"buffer_load_dwordx4 v[{b}:{b+3}], v{V_KV}, {srd}, {so} offen offset:{(jn&3)*1024} {g.pol}")
        for j in range(16):
            A(f"s_waitcnt vmcnt({D-1})")
            if D < NB: issue(j + D)
            consume(RING + 4*(j % NB), j)
            if D == NB: issue(j + D)
    loop_body("s[4:7]", kdot)
    kfinish()
    A("s_add_u32 s40, s40, 131072")
    A("s_add_u32 s41, s41, 1")
    A("s_cmp_lt_u32 s41, 7")
    A("s_cbranch_scc1 L_kloop")
    g.stamp(13)
    kn = 112 + D
    g.q = [f"k{112+i}" for i in range(D)]
    def f_pack(i):
        def f():
            for t in range(4):
                A(f"v_lshl_or_b32 v{RB+4*i+t}, v{RB+8*i+2*t+1}, 16, v{RB+8*i+2*t}")
        return f
    for n in range(112, 128):
        i = n - 112
        kstep(n, [f_pack(i)] if i < 7 else [])
    for _ in range(g.XV): issue_next()
    kfinish()
    g.stamp(4)
    m, l = T, T+1
    A(f"v_max3_f32 v{m}, v{VS}, v{VS+1}, v{VS+2}")
    A(f"v_max3_f32 v{m}, v{m}, v{VS+3}, v{VS+4}")
    A(f"v_max3_f32 v{m}, v{m}, v{VS+5}, v{VS+6}")
    A(f"v_max_f32 v{m}, v{m}, v{VS+7}")
    wave_allreduce(g, [m], "v_max_f32")
    A(f"s_mov_b32 s55, {LOG2E}")
    for a in range(8):
        A(f"v_sub_f32 v{VS+a}, v{VS+a}, v{m}")
        A(f"v_mul_f32 v{VS+a}, s55, v{VS+a}")
    for a in range(8): A(f"v_exp_f32 v{VS+a}, v{VS+a}")
    A(f"v_add_f32 v{l}, v{VS}, v{VS+1}")
    for a in range(2, 8): A(f"v_add_f32 v{l}, v{l}, v{VS+a}")
    wave_allreduce(g, [l], "v_add_f32")
    A("s_lshl_b32 s42, s3, 3")
    A(f"v_mov_b32 v{T+2}, s42")
    A(f"ds_write_b64 v{T+2}, v[{m}:{l}] offset:{L_ST}")
    A("s_waitcnt lgkmcnt(0)")
    A("s_barrier")
    A(f"v_mov_b32 v{T+2}, 0")
    for i in range(4): A(f"ds_read_b128 v[{T+4+4*i}:{T+7+4*i}], v{T+2} offset:{L_ST+16*i}")
    A("s_waitcnt lgkmcnt(0)")
    M, Ls = T+2, T+3
    mi = [T+4+2*i for i in range(8)]; li = [T+5+2*i for i in range(8)]
    A(f"v_max3_f32 v{M}, v{mi[0]}, v{mi[1]}, v{mi[2]}")
    A(f"v_max3_f32 v{M}, v{M}, v{mi[3]}, v{mi[4]}")
    A(f"v_max3_f32 v{M}, v{M}, v{mi[5]}, v{mi[6]}")
    A(f"v_max_f32 v{M}, v{M}, v{mi[7]}")
    for r in mi + [m]:
        A(f"v_sub_f32 v{r}, v{r}, v{M}")
        A(f"v_mul_f32 v{r}, s55, v{r}")
    for r in mi + [m]: A(f"v_exp_f32 v{r}, v{r}")
    A(f"v_mul_f32 v{Ls}, v{mi[0]}, v{li[0]}")
    for i in range(1, 8): A(f"v_fmac_f32 v{Ls}, v{mi[i]}, v{li[i]}")
    A(f"v_rcp_f32 v{Ls}, v{Ls}")
    A(f"v_mul_f32 v{m}, v{m}, v{Ls}")
    for a in range(8): A(f"v_mul_f32 v{VS+a}, v{VS+a}, v{m}")
    for a in range(8): A(f"v_cvt_pk_bf16_f32 v{VS+a}, v{VS+a}, 0")
    for a in range(8): A(f"v_lshlrev_b32 v{VH+a}, 16, v{VS+a}")
    for e in range(8): A(f"v_mov_b32 v{ACC+e}, 0")
    g.stamp(5)
    def vshift():
        for a in range(7):
            A(f"v_mov_b32 v{VS+a}, v{VS+a+1}"); A(f"v_mov_b32 v{VH+a}, v{VH+a+1}")
    pre = vn
    for _ in range(D): issue_next()
    for n in range(16):
        g.wait(f"v{n}")
        if vn <= n + D and D < NB: issue_next()
        pv(vbuf(n), VS, VH, n)
        if vn <= n + D: issue_next()
    vshift()
    assert g.q == [f"v{16+i}" for i in range(D)], g.q
    A("s_mov_b32 s40, 131072")
    A("s_mov_b32 s41, 1")
    g.lab("L_vloop")
    loop_body("s[8:11]", lambda b, j: pv(b, VS, VH, j))
    vshift()
    A("s_add_u32 s40, s40, 131072")
    A("s_add_u32 s41, s41, 1")
    A("s_cmp_lt_u32 s41, 8")
    A("s_cbranch_scc1 L_vloop")
    g.q = []
    g.stamp(6)
    A(f"v_mov_b32 v{T+20}, 0")
    A(f"global_load_dword v{T+21}, v{T+20}, s[84:85] sc1")
    reduce128(g)
    if g.dump:
        A(f"s_lshl_b32 s42, s2, 8"); A(f"s_add_u32 s42, s42, {DUMP+0x10000}")
        A(f"v_add_u32 v{T+6}, s42, v{V15}")
        A("s_cmp_lg_u32 s3, 0"); A("s_cbranch_scc1 L_nd2")
        A(f"global_store_dword v{T+6}, v{T+16}, s[86:87]")
        g.lab("L_nd2")
    A("s_lshl_b32 s42, s3, 3")
    for u in range(8):
        A(f"v_readlane_b32 s{48+u}, v{T+16}, s42")
        if u < 7: A("s_add_u32 s42, s42, 1")
    WA = VP
    for n in range(10): A(f"v_mov_b32 v{WA+n}, 0")
    for u in range(8):
        for n in range(10):
            A(f"v_dot2c_f32_bf16 v{WA+n}, s{48+u}, v{RA+10*u+n}")
    A(f"v_mov_b32 v{T}, v{WA}"); A(f"v_mov_b32 v{T+1}, v{WA+4}"); A(f"v_mov_b32 v{T+2}, v{WA+1}"); A(f"v_mov_b32 v{T+3}, v{WA+5}")
    A(f"v_mov_b32 v{T+4}, v{WA+2}"); A(f"v_mov_b32 v{T+5}, v{WA+6}"); A(f"v_mov_b32 v{T+6}, v{WA+3}"); A(f"v_mov_b32 v{T+7}, v{WA+7}")
    A("s_mul_i32 s42, s3, 2560")
    A(f"v_add_u32 v{T+8}, s42, v{V14}")
    A(f"v_add_u32 v{T+9}, s42, v{V_L8}")
    A(f"ds_write_b128 v{T+8}, v[{T}:{T+3}] offset:{L_RED2}")
    A(f"ds_write_b128 v{T+8}, v[{T+4}:{T+7}] offset:{L_RED2+1024}")
    A(f"ds_write_b64 v{T+9}, v[{WA+8}:{WA+9}] offset:{L_RED2+2048}")
    A(f"v_and_b32 v{T+10}, 1, v0"); A(f"v_lshlrev_b32 v{T+10}, 10, v{T+10}")
    A(f"v_lshrrev_b32 v{T+11}, 1, v0"); A(f"v_lshl_add_u32 v{T+10}, v{T+11}, 4, v{T+10}")
    A(f"v_lshlrev_b32 v{T+11}, 4, v0")
    A("v_cmp_gt_u32 vcc, 128, v0")
    A(f"v_cndmask_b32 v{T+10}, v{T+11}, v{T+10}, vcc")
    A("s_waitcnt lgkmcnt(0)")
    A("s_barrier")
    A("s_cmp_gt_u32 s3, 2")
    A("s_cbranch_scc1 L_pub_done")
    R8 = RING
    for i in range(8): A(f"ds_read_b128 v[{R8+4*i}:{R8+4*i+3}], v{T+10} offset:{L_RED2+2560*i}")
    for i in range(1, 8):
        A(f"s_waitcnt lgkmcnt({7-i})")
        A(f"v_pk_add_f32 v[{R8}:{R8+1}], v[{R8}:{R8+1}], v[{R8+4*i}:{R8+4*i+1}]")
        A(f"v_pk_add_f32 v[{R8+2}:{R8+3}], v[{R8+2}:{R8+3}], v[{R8+4*i+2}:{R8+4*i+3}]")
    for t in range(4): A(f"v_min_u32 v{R8+t}, -2, v{R8+t}")
    A(f"buffer_store_dwordx4 v[{R8}:{R8+3}], v{V_PO}, s[24:27], 0 offen sc1")
    g.lab("L_pub_done")
    g.stamp(7)
    A("s_cmp_eq_u32 s44, 0")
    A("s_cbranch_scc1 L_fin")
    A("s_mov_b32 s41, 0")
    g.lab("L_rdy")
    A("s_waitcnt vmcnt(0)")
    A(f"v_readfirstlane_b32 s42, v{T+21}")
    A("s_cmp_ge_u32 s42, 256")
    A("s_cbranch_scc1 L_rdy_ok")
    A("s_add_u32 s41, s41, 1")
    A("s_cmp_gt_u32 s41, 400000")
    A("s_cbranch_scc1 L_rdy_ok")
    A(f"global_load_dword v{T+21}, v{T+20}, s[84:85] sc1")
    A("s_branch L_rdy")
    g.lab("L_rdy_ok")
    A("s_cmp_eq_u32 s44, 2")
    A("s_cbranch_scc1 L_ffn")
    A("s_cmp_eq_u32 s44, 3")
    A("s_cbranch_scc1 L_down")

    def poll(name, loads):
        A("s_mov_b32 s41, 0")
        for (ins, r, n) in loads: A(ins)
        g.lab(f"L_{name}_chk")
        A("s_waitcnt vmcnt(0)")
        for i, (ins, r, n) in enumerate(loads):
            ms = f"s[{64+2*i}:{65+2*i}]"
            if n == 4:
                A(f"v_max3_u32 v{T+29}, v{r}, v{r+1}, v{r+2}")
                A(f"v_max_u32 v{T+29}, v{T+29}, v{r+3}")
                A(f"v_cmp_eq_u32 {ms}, -1, v{T+29}")
            else:
                A(f"v_cmp_eq_u32 {ms}, -1, v{r}")
        A("s_mov_b64 s[42:43], s[64:65]")
        for i in range(1, len(loads)): A(f"s_or_b64 s[42:43], s[42:43], s[{64+2*i}:{65+2*i}]")
        A("s_cmp_eq_u64 s[42:43], 0")
        A(f"s_cbranch_scc1 L_{name}_ok")
        A("s_add_u32 s41, s41, 1")
        A("s_cmp_gt_u32 s41, 400000")
        A(f"s_cbranch_scc1 L_{name}_ok")
        if g.sleep: A(f"s_sleep {g.sleep}")
        for i, (ins, r, n) in enumerate(loads):
            A(f"s_mov_b64 exec, s[{64+2*i}:{65+2*i}]")
            A(f"s_cbranch_execz L_{name}_s{i}")
            A(ins)
            g.lab(f"L_{name}_s{i}")
        A("s_mov_b64 exec, -1")
        A(f"s_branch L_{name}_chk")
        g.lab(f"L_{name}_ok")

    A("s_cmp_gt_u32 s3, 3")
    A("s_cbranch_scc1 L_fin")
    A("s_lshl_b32 s42, s39, 2"); A("s_add_u32 s42, s42, s3")
    A("s_mul_i32 s43, s38, 20"); A("s_add_u32 s43, s43, s42"); A("s_lshl_b32 s40, s43, 12")
    A(f"v_and_b32 v{T}, 7, v0"); A(f"v_lshlrev_b32 v{T}, 3, v{T}")
    A(f"v_lshrrev_b32 v{T+1}, 5, v{V_LANE}"); A(f"v_lshl_add_u32 v{T}, v{T+1}, 2, v{T}")
    A("s_lshl_b32 s42, s42, 6")
    A(f"v_add_u32 v{T}, s42, v{T}")
    A(f"buffer_load_dword v{T+2}, v{T}, s[28:31], 0 offen")
    A("s_mul_i32 s42, s38, 1280"); A(f"s_add_u32 s42, s42, {HBUF}")
    A(f"v_add_u32 v{T}, s42, v{T}")
    poll("ra", [(f"buffer_load_dwordx4 v[{RING+4*i}:{RING+4*i+3}], v{V14}, s[24:27], s40 offen offset:{1024*i} sc1", RING+4*i, 4) for i in range(4)])
    g.stamp(8)
    r = RING
    for i in (1, 2, 3):
        A(f"v_pk_add_f32 v[{r}:{r+1}], v[{r}:{r+1}], v[{r+4*i}:{r+4*i+1}]")
        A(f"v_pk_add_f32 v[{r+2}:{r+3}], v[{r+2}:{r+3}], v[{r+4*i+2}:{r+4*i+3}]")
    A(f"v_permlane32_swap_b32 v{r}, v{r+2}")
    A(f"v_permlane32_swap_b32 v{r+1}, v{r+3}")
    A(f"v_add_f32 v{r}, v{r}, v{r+2}"); A(f"v_add_f32 v{r+1}, v{r+1}, v{r+3}")
    A(f"v_mov_b32 v{r+2}, v{r}"); A(f"v_mov_b32 v{r+3}, v{r+1}")
    A(f"v_permlane16_swap_b32 v{r}, v{r+2}")
    A(f"v_permlane16_swap_b32 v{r+1}, v{r+3}")
    A(f"v_add_f32 v{r}, v{r}, v{r+2}"); A(f"v_add_f32 v{r+1}, v{r+1}, v{r+3}")
    A(f"v_add_f32_dpp v{r}, v{r}, v{r} row_ror:8 row_mask:0xf bank_mask:0xf")
    A(f"v_add_f32_dpp v{r+1}, v{r+1}, v{r+1} row_ror:8 row_mask:0xf bank_mask:0xf")
    A(f"v_cvt_pk_bf16_f32 v{r}, v{r}, v{r+1}")
    A(f"v_lshlrev_b32 v{r+1}, 16, v{r}"); A(f"v_and_b32 v{r+2}, 0xffff0000, v{r}")
    A(f"v_lshlrev_b32 v{r+3}, 16, v{T+2}"); A(f"v_and_b32 v{r+4}, 0xffff0000, v{T+2}")
    A(f"v_add_f32 v{r+1}, v{r+1}, v{r+3}"); A(f"v_add_f32 v{r+2}, v{r+2}, v{r+4}")
    A(f"v_cvt_pk_bf16_f32 v{r}, v{r+1}, v{r+2}")
    A(f"v_min_u32 v{r}, -2, v{r}")
    A("s_mov_b32 exec_lo, 0xff"); A("s_mov_b32 exec_hi, 0xff")
    A(f"buffer_store_dword v{r}, v{T}, s[24:27], 0 offen sc1")
    A("s_mov_b64 exec, -1")
    g.stamp(9)
    A("s_branch L_fin")

    g.lab("L_ffn")
    A("s_mul_i32 s40, s3, 1280"); A(f"s_add_u32 s40, s40, {HBUF}")
    H4, H1 = RING, RING+4
    A(f"s_mul_i32 s42, s3, {XPITCH}")
    A(f"v_add_u32 v{RING+8}, s42, v{V14}")
    A(f"v_add_u32 v{RING+9}, s42, v{V15}")
    A(f"v_and_b32 v{RING+10}, 7, v0")
    A(f"s_mov_b32 s42, {XPITCH}")
    A(f"v_mul_lo_u32 v{RING+10}, v{RING+10}, s42")
    A(f"v_bfe_u32 v{RING+11}, v0, 4, 2")
    A(f"v_lshl_add_u32 v{RING+10}, v{RING+11}, 4, v{RING+10}")
    A("s_lshr_b32 s42, s3, 1"); A("s_mul_i32 s42, s42, 320")
    A(f"v_add_u32 v{RING+10}, s42, v{RING+10}")
    A("s_lshl_b32 s42, s3, 10")
    A(f"v_add_u32 v{RING+12}, s42, v{V14}")
    A(f"v_and_b32 v{RING+13}, 0x37, v{V_LANE}"); A(f"v_lshlrev_b32 v{RING+13}, 4, v{RING+13}")
    A(f"v_bfe_u32 v{RING+14}, v0, 3, 1"); A(f"v_lshl_add_u32 v{RING+13}, v{RING+14}, 3, v{RING+13}")
    A(f"v_bfe_u32 v{RING+15}, v0, 5, 1"); A(f"v_lshlrev_b32 v{RING+15}, 7, v{RING+15}")
    A(f"v_and_b32 v{RING+16}, 7, v0"); A(f"v_lshl_add_u32 v{RING+15}, v{RING+16}, 4, v{RING+15}")
    A(f"v_bfe_u32 v{RING+16}, v0, 4, 1"); A(f"v_lshl_add_u32 v{RING+15}, v{RING+16}, 3, v{RING+15}")
    A(f"v_lshl_add_u32 v{RING+15}, v{RING+14}, 2, v{RING+15}")
    poll("hb", [(f"buffer_load_dwordx4 v[{H4}:{H4+3}], v{V14}, s[24:27], s40 offen sc1", H4, 4),
                (f"buffer_load_dword v{H1}, v{V15}, s[24:27], s40 offen offset:1024 sc1", H1, 1)])
    g.stamp(8)
    ln_stats(g, H4, H1, T+13, T+14)
    for k in range(10): A(f"v_sub_f32 v{T+k}, v{T+k}, v{T+13}")
    for k in range(5): A(f"v_cvt_pk_bf16_f32 v{H4+k}, v{T+2*k}, v{T+2*k+1}")
    for k in range(5):
        A(f"v_lshlrev_b32 v{T+2*k}, 16, v{H4+k}"); A(f"v_and_b32 v{T+2*k+1}, 0xffff0000, v{H4+k}")
    for k in range(10): A(f"v_mul_f32 v{T+k}, v{T+k}, v{T+14}")
    for k in range(5): A(f"v_cvt_pk_bf16_f32 v{H4+k}, v{T+2*k}, v{T+2*k+1}")
    A(f"ds_write_b128 v{RING+8}, v[{H4}:{H4+3}] offset:{L_XN}")
    A(f"ds_write_b32 v{RING+9}, v{H1} offset:{L_XN+1024}")
    A("s_waitcnt lgkmcnt(0)")
    A("s_barrier")
    BF = VP
    for i in range(5): A(f"ds_read_b128 v[{BF+4*i}:{BF+4*i+3}], v{RING+10} offset:{L_XN+64*i}")
    for i in range(5):
        A(f"s_waitcnt lgkmcnt({4-i})")
        c = "0" if i == 0 else f"v[{ACC}:{ACC+3}]"
        A(f"v_mfma_f32_16x16x32_bf16 v[{ACC}:{ACC+3}], v[{RB+4*i}:{RB+4*i+3}], v[{BF+4*i}:{BF+4*i+3}], {c}")
    A(f"ds_write_b128 v{RING+12}, v[{ACC}:{ACC+3}] offset:{L_RED3}")
    A("s_waitcnt lgkmcnt(0)")
    A("s_barrier")
    A("s_cmp_lg_u32 s3, 0")
    A("s_cbranch_scc1 L_fin")
    for i in range(8): A(f"ds_read_b64 v[{T+2*i}:{T+2*i+1}], v{RING+13} offset:{L_RED3+1024*i}")
    A("s_waitcnt lgkmcnt(0)")
    for i in (2, 4, 6):
        A(f"v_pk_add_f32 v[{T}:{T+1}], v[{T}:{T+1}], v[{T+2*i}:{T+2*i+1}]")
        A(f"v_pk_add_f32 v[{T+2}:{T+3}], v[{T+2}:{T+3}], v[{T+2*i+2}:{T+2*i+3}]")
    A(f"v_cvt_pk_bf16_f32 v{T+4}, v{T}, v{T+1}"); A(f"v_cvt_pk_bf16_f32 v{T+5}, v{T+2}, v{T+3}")
    A(f"v_lshlrev_b32 v{T}, 16, v{T+4}"); A(f"v_and_b32 v{T+1}, 0xffff0000, v{T+4}")
    A(f"v_lshlrev_b32 v{T+2}, 16, v{T+5}"); A(f"v_and_b32 v{T+3}, 0xffff0000, v{T+5}")
    import struct, math
    f2u = lambda f: struct.unpack("<I", struct.pack("<f", f))[0]
    c1 = -2*math.sqrt(2/math.pi)*math.log2(math.e); c2 = c1*0.044715
    A(f"s_mov_b32 s42, {f2u(c2):#x}"); A(f"v_mov_b32 v{T+8}, {f2u(c1):#x}")
    for t in range(2):
        A(f"v_mul_f32 v{T+6+t}, v{T+t}, v{T+t}")
    for t in range(2):
        A(f"v_fma_f32 v{T+6+t}, v{T+6+t}, s42, v{T+8}")
    for t in range(2):
        A(f"v_mul_f32 v{T+6+t}, v{T+6+t}, v{T+t}")
    for t in range(2): A(f"v_exp_f32 v{T+6+t}, v{T+6+t}")
    for t in range(2): A(f"v_add_f32 v{T+6+t}, 1.0, v{T+6+t}")
    for t in range(2): A(f"v_rcp_f32 v{T+6+t}, v{T+6+t}")
    for t in range(2): A(f"v_mul_f32 v{T+t}, v{T+t}, v{T+6+t}")
    A(f"v_cvt_pk_bf16_f32 v{T+4}, v{T}, v{T+1}")
    A(f"v_lshlrev_b32 v{T}, 16, v{T+4}"); A(f"v_and_b32 v{T+1}, 0xffff0000, v{T+4}")
    A(f"v_mul_f32 v{T}, v{T}, v{T+2}"); A(f"v_mul_f32 v{T+1}, v{T+1}, v{T+3}")
    A(f"v_cvt_pk_bf16_f32 v{T+4}, v{T}, v{T+1}")
    A(f"v_min_u32 v{T+4}, -2, v{T+4}")
    A(f"buffer_store_dword v{T+4}, v{RING+15}, s[24:27], s56 offen sc1")
    g.stamp(9)
    A("s_branch L_fin")

    g.lab("L_down")
    A(f"s_mul_i32 s42, s3, 3584"); A(f"s_add_u32 s42, s42, {ACT}")
    A(f"s_sub_u32 s43, {ACT+54*512}, s42")
    g.srd(16, 86, 87, "s42", "s43")
    A(f"v_bfe_u32 v{T}, v0, 4, 2"); A(f"v_lshlrev_b32 v{T}, 7, v{T}")
    A(f"v_and_b32 v{T+1}, 7, v0"); A(f"v_lshl_add_u32 v{T}, v{T+1}, 4, v{T}")
    A("s_lshl_b32 s42, s3, 10")
    A(f"v_add_u32 v{T+2}, s42, v{V14}")
    A(f"v_and_b32 v{T+3}, 0x37, v{V_LANE}"); A(f"v_lshlrev_b32 v{T+3}, 4, v{T+3}")
    A(f"v_bfe_u32 v{T+4}, v0, 3, 1"); A(f"v_lshl_add_u32 v{T+3}, v{T+4}, 3, v{T+3}")
    A("s_movk_i32 s42, 1280")
    A(f"v_mul_lo_u32 v{T+5}, v{T+1}, s42")
    A(f"v_bfe_u32 v{T+6}, v0, 4, 2"); A(f"v_lshl_add_u32 v{T+5}, v{T+6}, 3, v{T+5}")
    A(f"v_lshl_add_u32 v{T+5}, v{T+4}, 2, v{T+5}")
    A("s_lshl_b32 s42, s45, 5")
    A(f"v_add_u32 v{T+5}, s42, v{T+5}")
    A(f"s_mov_b32 s40, {HBUF}")
    A("s_cmp_lg_u32 s3, 0")
    A("s_cbranch_scc1 L_dn1")
    poll("hd", [(f"buffer_load_dword v{T+7}, v{T+5}, s[24:27], s40 offen sc1", T+7, 1)])
    g.lab("L_dn1")
    AF = RING
    poll("ac", [(f"buffer_load_dwordx4 v[{AF+4*i}:{AF+4*i+3}], v{T}, s[16:19], 0 offen offset:{512*i} sc1", AF+4*i, 4) for i in range(7)])
    g.stamp(8)
    for i in range(7):
        c = "0" if i == 0 else f"v[{ACC}:{ACC+3}]"
        A(f"v_mfma_f32_16x16x32_bf16 v[{ACC}:{ACC+3}], v[{RB+4*i}:{RB+4*i+3}], v[{AF+4*i}:{AF+4*i+3}], {c}")
    A(f"ds_write_b128 v{T+2}, v[{ACC}:{ACC+3}] offset:{L_RED3}")
    A("s_waitcnt lgkmcnt(0)")
    A("s_barrier")
    A("s_cmp_lg_u32 s3, 0")
    A("s_cbranch_scc1 L_fin")
    for i in range(8): A(f"ds_read_b64 v[{VP+2*i}:{VP+2*i+1}], v{T+3} offset:{L_RED3+1024*i}")
    for i in range(1, 8):
        A(f"s_waitcnt lgkmcnt({7-i})")
        A(f"v_pk_add_f32 v[{VP}:{VP+1}], v[{VP}:{VP+1}], v[{VP+2*i}:{VP+2*i+1}]")
    A(f"v_cvt_pk_bf16_f32 v{VP}, v{VP}, v{VP+1}")
    A(f"v_lshlrev_b32 v{VP+1}, 16, v{VP}"); A(f"v_and_b32 v{VP+2}, 0xffff0000, v{VP}")
    A(f"v_lshlrev_b32 v{VP+3}, 16, v{T+7}"); A(f"v_and_b32 v{VP+4}, 0xffff0000, v{T+7}")
    A(f"v_add_f32 v{VP+1}, v{VP+1}, v{VP+3}"); A(f"v_add_f32 v{VP+2}, v{VP+2}, v{VP+4}")
    A(f"v_cvt_pk_bf16_f32 v{VP}, v{VP+1}, v{VP+2}")
    A(f"buffer_store_dword v{VP}, v{T+5}, s[32:35], 0 offen")
    g.stamp(9)
    g.lab("L_fin")
    if g.ts:
        A("s_getreg_b32 s42, hwreg(HW_REG_XCC_ID)")
        A(f"v_writelane_b32 v{V_TS}, s42, 14")
        A(f"v_writelane_b32 v{V_TS}, s44, 15")
        A("s_waitcnt vmcnt(0)")
        g.stamp(10)
        A("s_lshl_b32 s42, s2, 3"); A("s_add_u32 s42, s42, s3"); A("s_lshl_b32 s42, s42, 6"); A(f"s_add_u32 s42, s42, {TSOFF}")
        A(f"v_lshl_add_u32 v{T}, v{V_LANE}, 2, s42")
        A("s_mov_b64 exec, 0xffff")
        A(f"global_store_dword v{T}, v{V_TS}, s[86:87]")
    g.lab("L_end")
    A("s_endpgm")
    body, added = hazard.fix(L)
    body += ['.section .rodata,"a"', ".p2align 6", f".amdhsa_kernel {KN}",
             "  .amdhsa_next_free_vgpr 256", "  .amdhsa_next_free_sgpr 96", "  .amdhsa_accum_offset 256",
             "  .amdhsa_group_segment_fixed_size 0", "  .amdhsa_kernarg_size 96", "  .amdhsa_user_sgpr_count 2",
             "  .amdhsa_user_sgpr_kernarg_segment_ptr 1", "  .amdhsa_system_sgpr_workgroup_id_x 1", ".end_amdhsa_kernel"]
    return "\n".join(body) + "\n"

if __name__ == "__main__":
    out = sys.argv[1]
    kw = eval("dict(" + (sys.argv[2] if len(sys.argv) > 2 else "") + ")")
    open(out, "w").write(gen(**kw))
```
